```python
import torch

def _softmax(x, axis=-1):
    return torch.softmax(x, dim=axis)

def _gelu(x):
    return torch.nn.functional.gelu(x, approximate='tanh')

def _silu(x):
    return torch.nn.functional.silu(x)

def _sigmoid(x):
    return torch.sigmoid(x)

def _layernorm(x, axis=-1, eps=1e-05):
    m = x.mean(dim=axis, keepdim=True)
    v = x.var(dim=axis, keepdim=True, unbiased=False)
    return (x - m) / torch.sqrt(v + eps)

def _scatter_add(tgt, idx, src, axis=0):
    return tgt.clone().index_add_(axis, idx, src)

def _segment_sum(src, seg, n):
    out = torch.zeros((n,) + src.shape[1:], dtype=src.dtype)
    return out.index_add_(0, seg, src)

def _pad(x, pw):
    flat = tuple((v for pair in reversed(pw) for v in pair))
    return torch.nn.functional.pad(x, flat)
kernel_name = 'adaLN_cond__sliding_block_cached__geglu_ffn__decode'

def setup_inputs():

    _w = lambda a: (lambda t: t.to(torch.bfloat16) if t.is_floating_point() else t)(torch.as_tensor(a))

    def _A_setup():
        B, Sq, D = (1, 1, 512)
        Hq, Hkv, Sk, Dh = (32, 8, 65536, 128)
        assert Hq % Hkv == 0, (Hq, Hkv)
        return {'x': _w((lambda *s: torch.randn(*s, dtype=torch.bfloat16) * 0.1)(B, Sq, D)), 'k_cache': _w((lambda *s: torch.randn(*s, dtype=torch.bfloat16) * 0.8)(B, Hkv, Sk, Dh)), 'v_cache': _w((lambda *s: torch.randn(*s, dtype=torch.bfloat16) * 1.6)(B, Hkv, Sk, Dh)), 'wq': _w((lambda *s: torch.randn(*s, dtype=torch.bfloat16) * 0.8)(D, Hq * Dh) * D ** (-0.5)), 'wo': _w((lambda *s: torch.randn(*s, dtype=torch.bfloat16) * 1.6)(Hq * Dh, D) * (Hq * Dh) ** (-0.5))}
    _A_in = _A_setup()

    def _B_setup():
        B, S, D, F = (1, 1, 512, 1792)
        return {'x': _w((lambda *s: torch.randn(*s, dtype=torch.bfloat16) * 0.1)(B, S, D)), 'w_gate': _w((lambda *s: torch.randn(*s, dtype=torch.bfloat16) * 0.2)(D, F)), 'w_up': _w((lambda *s: torch.randn(*s, dtype=torch.bfloat16) * 0.2)(D, F)), 'w_down': _w((lambda *s: torch.randn(*s, dtype=torch.bfloat16) * 0.2)(F, D))}
    _B_in = _B_setup()
    return {'A_x': _A_in['x'], 'A_k_cache': _A_in['k_cache'], 'A_v_cache': _A_in['v_cache'], 'A_wq': _A_in['wq'], 'A_wo': _A_in['wo'], 'B_x': _B_in['x'], 'B_w_gate': _B_in['w_gate'], 'B_w_up': _B_in['w_up'], 'B_w_down': _B_in['w_down'], 'c': _w((lambda *s: torch.randn(*s, dtype=torch.bfloat16) * 0.4)(1, 512) * 8.0), 'w_mod': _w((lambda *s: torch.randn(*s, dtype=torch.bfloat16) * 0.4)(512, 6 * 512) * 512 ** (-0.5) * 8.0)}

def reference(A_x, A_k_cache, A_v_cache, A_wq, A_wo, B_x, B_w_gate, B_w_up, B_w_down, c, w_mod):

    def _A_ref(x, k_cache, v_cache, wq, wo):
        B, Sq, D = x.shape
        Hq, Dh = (32, 128)
        Hkv, Sk = (k_cache.shape[1], k_cache.shape[2])
        W = min(4096, max(256, Sk // 4))
        rep = Hq // Hkv
        q = (lambda x, *d: x.permute(*d))((x @ wq).reshape(B, Sq, Hq, Dh), 0, 2, 1, 3)
        k = (lambda x, n, axis: torch.repeat_interleave(x, n, dim=axis))(k_cache[:, :, Sk - W:, :], rep, axis=1)
        v = (lambda x, n, axis: torch.repeat_interleave(x, n, dim=axis))(v_cache[:, :, Sk - W:, :], rep, axis=1)
        scores = torch.einsum('bhqd,bhkd->bhqk', q, k) * Dh ** (-0.5)
        p = _softmax(scores, axis=-1)
        o = torch.einsum('bhqk,bhkd->bhqd', p, v)
        return (lambda x, *d: x.permute(*d))(o, 0, 2, 1, 3).reshape(B, Sq, Hq * Dh) @ wo

    def _B_ref(x, w_gate, w_up, w_down):
        return _gelu(x @ w_gate) * (x @ w_up) @ w_down
    x = A_x
    mod = (_silu(c) @ w_mod).reshape(c.shape[0], 6, 1, -1)
    sa, ca, ga, sb, cb, gb = (mod[:, 0].clone(), mod[:, 1].clone(), mod[:, 2].clone(), mod[:, 3].clone(), mod[:, 4].clone(), mod[:, 5].clone())
    h = _layernorm(x, axis=-1) * (1 + ca) + sa
    x = x + ga * _A_ref(h, A_k_cache, A_v_cache, A_wq, A_wo)
    h = _layernorm(x, axis=-1) * (1 + cb) + sb
    x = x + gb * _B_ref(h, B_w_gate, B_w_up, B_w_down)
    return x
```

```python
import re

TRANS = ('v_exp_f32','v_log_f32','v_rcp_f32','v_rsq_f32','v_sqrt_f32','v_sin_f32','v_cos_f32','v_rcp_iflag_f32')

def regs_of(tok):
    tok = tok.strip()
    tok = tok.lstrip('-')
    m = re.match(r'^(?:abs|neg)\((.*)\)$', tok)
    if m: tok = m.group(1)
    tok = tok.strip('|')
    m = re.match(r'^([vsa])(\d+)$', tok)
    if m: return {(m.group(1), int(m.group(2)))}
    m = re.match(r'^([vsa])\[(\d+):(\d+)\]$', tok)
    if m: return {(m.group(1), i) for i in range(int(m.group(2)), int(m.group(3)) + 1)}
    if tok in ('vcc', 'vcc_lo', 'vcc_hi'): return {('vcc',)}
    if tok in ('exec', 'exec_lo', 'exec_hi'): return {('exec',)}
    if tok == 'm0': return {('m0',)}
    return set()

def split_ops(s):
    out, depth, cur = [], 0, ''
    for ch in s:
        if ch in '[(': depth += 1
        if ch in '])': depth -= 1
        if ch == ',' and depth == 0:
            out.append(cur); cur = ''
        else: cur += ch
    if cur.strip(): out.append(cur)
    return [o.strip() for o in out]

class Ins:
    def __init__(self, text):
        self.text = text
        t = text.split(';')[0].strip()
        parts = t.split(None, 1)
        self.op = parts[0]
        rest = parts[1] if len(parts) > 1 else ''
        ops = split_ops(rest)
        self.mods = ''
        if ops:
            lastparts = ops[-1].split(None, 1)
            ops[-1] = lastparts[0]
            self.mods = lastparts[1] if len(lastparts) > 1 else ''
        self.ops = ops
        op = self.op
        self.is_mfma = op.startswith('v_mfma')
        self.is_valu = op.startswith('v_') and not self.is_mfma
        self.is_vmem = op.startswith(('buffer_', 'global_', 'flat_'))
        self.is_ds = op.startswith('ds_')
        self.is_salu = op.startswith('s_')
        self.is_dpp = ('_dpp' in op) or bool(re.search(r'row_|quad_perm|wave_', self.mods))
        self.is_trans = op.replace('_e32', '').replace('_e64', '') in TRANS
        self.is_permlane = op.startswith('v_permlane')
        self.is_readlane = op.startswith(('v_readlane', 'v_readfirstlane', 'v_writelane'))
        R = [regs_of(o) for o in ops]
        self.wr, self.rd = set(), set()
        self.srcC = set(); self.srcAB = set(); self.stdata = set()
        if self.is_mfma:
            self.wr = R[0]; self.srcAB = R[1] | R[2]; self.srcC = R[3]; self.rd = self.srcAB | self.srcC
            self.passes = 8 if '32x32' in op else 4
        elif self.is_valu:
            if self.is_permlane:
                self.wr = R[0] | R[1]; self.rd = R[0] | R[1]
            elif op.startswith('v_cmpx'):
                self.wr = R[0] | {('exec',)}; self.rd = set().union(*R[1:])
            elif re.match(r'v_(add|sub|subrev|addc|subb|subbrev)_co', op) or op.startswith(('v_div_scale', 'v_mad_u64', 'v_mad_i64')):
                self.wr = R[0] | R[1]; self.rd = set().union(*R[2:])
            spoken = False
            if not self.wr:
                self.wr = R[0] if R else set()
                self.rd = set().union(*R[1:]) if len(R) > 1 else set()
                if op.startswith(('v_fmac', 'v_mac', 'v_dot2c', 'v_pk_fmac', 'v_writelane')) or self.is_dpp:
                    self.rd |= R[0]
                if op.startswith('v_cndmask') and len(R) == 3: self.rd |= {('vcc',)}
        elif self.is_vmem:
            if 'store' in op or ('atomic' in op):
                if op.startswith('buffer'):
                    self.stdata = R[0]; self.rd = set().union(*R)
                else:
                    self.stdata = R[1]; self.rd = set().union(*R)
            else:
                if 'lds' in self.mods.split() or '_lds_' in op:
                    self.rd = set().union(*R) | {('m0',)}
                else:
                    self.wr = R[0]; self.rd = set().union(*R[1:])
        elif self.is_ds:
            if op.startswith(('ds_read', 'ds_bpermute', 'ds_permute', 'ds_swizzle')) or '_rtn' in op:
                self.wr = R[0]; self.rd = set().union(*R[1:])
            else:
                self.rd = set().union(*R)
        elif self.is_salu:
            if op.startswith(('s_cmp', 's_cbranch', 's_branch', 's_waitcnt', 's_nop', 's_barrier', 's_sleep', 's_setprio', 's_endpgm', 's_bitcmp', 's_setpc')):
                self.rd = set().union(*R) if R else set()
            else:
                self.wr = R[0] if R else set(); self.rd = set().union(*R[1:]) if len(R) > 1 else set()
                if 'saveexec' in op: self.wr |= {('exec',)}
        self.states = 1
        if op == 's_nop': self.states = int(ops[0], 0) + 1

def isv(r): return r[0] in ('v', 'a')
def iss(r): return r[0] in ('s', 'vcc')

def need(p, c):
    n = 0
    pv = {r for r in p.wr if isv(r)}
    ps = {r for r in p.wr if iss(r)}
    if p.is_valu:
        if c.is_mfma and (pv & c.rd): n = max(n, 2)
        if c.is_valu and c.is_dpp and (pv & c.rd): n = max(n, 2)
        if c.is_permlane and (pv & c.rd): n = max(n, 2)
        if c.is_readlane and (pv & c.rd): n = max(n, 1)
        if p.is_trans and c.is_valu and (pv & c.rd): n = max(n, 1)
        if p.is_trans and (c.is_vmem or c.is_ds) and (pv & c.rd): n = max(n, 1)
        if ps:
            if c.is_valu and (ps & c.rd): n = max(n, 4 if c.is_readlane else 2)
            if c.is_vmem and (ps & c.rd): n = max(n, 5)
            if c.op.startswith('v_div_fmas') and ('vcc',) in ps: n = max(n, 4)
            if c.is_salu and (ps & c.rd): n = max(n, 1)
            if c.op.startswith('s_cbranch_vcc') and ('vcc',) in ps: n = max(n, 1)
        if ('exec',) in p.wr:
            if c.is_dpp: n = max(n, 5)
            if c.is_readlane or c.is_permlane or c.is_mfma: n = max(n, 4)
            if c.is_valu and ('exec',) in c.rd: n = max(n, 2)
        if 'op_sel' in p.mods or 'sdwa' in p.op or 'dst_sel' in p.mods:
            if c.is_valu and (pv & (c.rd | c.wr)): n = max(n, 1)
    if p.is_mfma:
        k = {4: 8, 8: 12}[p.passes]
        if c.is_mfma:
            if pv & c.srcAB: n = max(n, k)
            if pv & c.srcC:
                if not (c.srcC == pv and c.passes == p.passes): n = max(n, k - 2)
            if (pv & c.wr) and not (pv & c.srcC): n = max(n, k)
        elif c.is_valu or c.is_vmem or c.is_ds:
            if pv & (c.rd | c.wr): n = max(n, k)
        if c.is_valu and (p.srcC & c.wr): n = max(n, {4: 3, 8: 7}[p.passes])
    if p.is_vmem and len(p.stdata) >= 3:
        if (p.stdata & c.wr): n = max(n, 2)
    if p.is_salu and ('m0',) in p.wr and ('m0',) in c.rd: n = max(n, 1)
    return n

class Asm:
    def __init__(self):
        self.lines = []
        self.hist = []
        self.npad = 0
    def raw(self, t): self.lines.append(t)
    def label(self, name):
        self.lines.append(name + ':')
    def pad_all(self, n=12):
        while n > 0:
            k = min(n, 16); self('s_nop %d' % (k - 1)); n -= k
    def __call__(self, text):
        for t in text.strip().split('\n'):
            t = t.strip()
            if not t or t.startswith(';'): continue
            if t.endswith(':') and ' ' not in t:
                self.label(t[:-1]); continue
            if t.startswith('.'):
                self.lines.append(t); continue
            c = Ins(t)
            dist = 0; req = 0
            for p in reversed(self.hist):
                r = need(p, c)
                if r - dist > req: req = r - dist
                dist += p.states
                if dist > 20: break
            if req > 0:
                nop = Ins('s_nop %d' % (req - 1))
                self.lines.append('  s_nop %d' % (req - 1)); self.hist.append(nop); self.npad += 1
            self.lines.append('  ' + t)
            self.hist.append(c)
            if len(self.hist) > 40: self.hist = self.hist[-40:]
            if c.op in ('s_branch', 's_endpgm', 's_setpc_b64'): self.hist = []
    def text(self): return '\n'.join(self.lines) + '\n'
```

```python
import sys
sys.path.insert(0, 'gen')
from asmlib import Asm
NAME = 'adaLN_cond__sliding_block_cached__geglu_ffn__decode'
PROF = '--prof' in sys.argv
SCALE_OUT = None
for x in sys.argv:
    if x.startswith('--scale='): SCALE_OUT = float(x.split('=')[1])
OUT = [x for x in sys.argv[1:] if not x.startswith('--')][0]

import struct
def f2u(f): return struct.unpack('<I', struct.pack('<f', f))[0]

MODB = 0x1000
QB   = 0x4000
MLB  = 0x8000
APB  = 0x10000
FPB  = 0x20000
OPB  = 0x40000
PRB  = 0x100000
WSN  = 0x200000

S_X, S_K, S_V, S_WQ, S_WO, S_BX, S_WG, S_WU, S_WD, S_C, S_WM, S_OUT, S_DBG, S_WS = [4 + 2*i for i in range(14)]
WS = 's[32:35]'; RA = 's[36:39]'; RB = 's[40:43]'; RC = 's[44:47]'
TAG = 's48'; WV = 's49'; PLO = 's50'; PHI = 's51'; T0 = 's52'; T1 = 's53'; CNT = 's54'; EP = 's55'
ID = 's56'; T2 = 's57'; T3 = 's58'; T4 = 's59'; MSK = 's60'; PK0 = 's61'; PK1 = 's62'; PK2 = 's63'; UP0 = 's64'; UP1 = 's65'
TP = 's[52:53]'
PS0 = 70
a = Asm()
nstamp = [0]
def stamp(i):
    if PROF: a(f's_memrealtime s[{PS0+2*i}:{PS0+2*i+1}]')
NST = 14
def prof_dump():
    if not PROF: return
    a(f'''s_waitcnt lgkmcnt(0)
s_mov_b64 exec, 1
s_lshl_b32 {T0}, s2, 10
s_lshl_b32 {T1}, {WV}, 6
s_add_u32 {T0}, {T0}, {T1}
s_add_u32 {T0}, {T0}, {PRB}
v_mov_b32 v1, {T0}''')
    for i in range(NST):
        a(f'v_mov_b32 v2, s{PS0+2*i}\nbuffer_store_dword v2, v1, {WS}, 0 offen offset:{4*i}')
def end():
    prof_dump(); a('s_endpgm')

def srd(r, base, nbytes):
    n = int(r[2:].split(':')[0])
    a(f'''s_mov_b32 s{n}, s{base}
s_mov_b32 s{n+1}, s{base+1}
s_mov_b32 s{n+2}, {nbytes}
s_mov_b32 s{n+3}, 0x20000''')
def vr(b, n): return f'v[{b}:{b+n-1}]'

def load_tile(L, voff, r, stride, nl=8, flags='nt'):
    for j in range(nl):
        o = j * stride
        if o < 4096:
            a(f'buffer_load_dwordx4 {vr(L+4*j,4)}, v{voff}, {r}, 0 offen offset:{o} {flags}')
        else:
            a(f's_mov_b32 {T0}, {o}\nbuffer_load_dwordx4 {vr(L+4*j,4)}, v{voff}, {r}, {T0} offen {flags}')
def perm_tile(F, L, nl=8):
    np_ = nl // 2
    for c in range(4):
        for p in range(np_):
            a(f'v_perm_b32 v{F+(2*c)*np_+p}, v{L+4*(2*p+1)+c}, v{L+4*(2*p)+c}, {PLO}')
            a(f'v_perm_b32 v{F+(2*c+1)*np_+p}, v{L+4*(2*p+1)+c}, v{L+4*(2*p)+c}, {PHI}')
lab = [0]
def newlab(p):
    lab[0] += 1; return f'L_{p}_{lab[0]}'
def poll(loads, sleep=0):
    L = newlab('poll'); D = newlab('pdone')
    a(f'{L}:')
    for d, vo, so, im in loads:
        a(f'buffer_load_dwordx4 {vr(d,4)}, v{vo}, {WS}, {so} offen offset:{im} sc1')
    a('s_waitcnt vmcnt(0)')
    for i, (d, vo, so, im) in enumerate(loads):
        if i == 0: a(f'v_cmp_ne_u32 vcc, {TAG}, v{d+3}')
        else: a(f'v_cmp_ne_u32 {TP}, {TAG}, v{d+3}\ns_or_b64 vcc, vcc, {TP}')
    a(f's_cbranch_vccz {D}')
    if sleep: a(f's_sleep {sleep}')
    a(f's_sub_u32 {CNT}, {CNT}, 1\ns_cbranch_scc0 {L}')
    a(f'{D}:')
def rnd1(d, s):
    a(f'v_cvt_pk_bf16_f32 v{d}, v{s}, v{s}\nv_and_b32 v{d}, {MSK}, v{d}')
def rnd_pairs(regs, tmp):
    for i in range(0, len(regs), 2):
        x, y = regs[i], regs[i+1]
        a(f'v_cvt_pk_bf16_f32 v{tmp}, v{x}, v{y}\nv_lshlrev_b32 v{x}, 16, v{tmp}\nv_and_b32 v{y}, {MSK}, v{tmp}')
def unpack(dst, src, n):
    for i in range(n):
        a(f'v_lshlrev_b32 v{dst+2*i}, 16, v{src+i}\nv_and_b32 v{dst+2*i+1}, {MSK}, v{src+i}')
DPPM = 'row_mask:0xf bank_mask:0xf'
def wave_reduce(op, t, u):
    for c in ('quad_perm:[1,0,3,2]', 'quad_perm:[2,3,0,1]', 'row_half_mirror', 'row_mirror'):
        a(f'{op}_dpp v{t}, v{t}, v{t} {c} {DPPM}')
    a(f'v_mov_b32 v{u}, v{t}\nv_permlane16_swap_b32 v{t}, v{u}\n{op} v{t}, v{t}, v{u}')
    a(f'v_mov_b32 v{u}, v{t}\nv_permlane32_swap_b32 v{t}, v{u}\n{op} v{t}, v{t}, v{u}')
def pack24(G, x0, x1, x2, x3):
    a(f'''v_perm_b32 v{G}, v{x0}, v{x3}, {PK0}
v_perm_b32 v{G+1}, v{x1}, v{x3}, {PK1}
v_perm_b32 v{G+2}, v{x2}, v{x3}, {PK2}
v_mov_b32 v{G+3}, {TAG}''')
def unpack24(G):
    a(f'''v_perm_b32 v{G+3}, v{G+1}, v{G}, {UP0}
v_perm_b32 v{G+3}, v{G+2}, v{G+3}, {UP1}''')
LOG2E = f2u(1.4426950408889634)

def layernorm8(X, T, tmp, tmp2, tmp3):
    a(f'v_add_f32 v{tmp}, v{X}, v{X+1}')
    for i in range(2, 8): a(f'v_add_f32 v{tmp}, v{tmp}, v{X+i}')
    wave_reduce('v_add_f32', tmp, tmp2)
    a(f'v_mul_f32 v{tmp}, {hex(f2u(1/512))}, v{tmp}')
    for i in range(8): a(f'v_sub_f32 v{T+i}, v{X+i}, v{tmp}')
    a(f'v_mul_f32 v{tmp3}, v{T}, v{T}')
    for i in range(1, 8): a(f'v_fmac_f32 v{tmp3}, v{T+i}, v{T+i}')
    wave_reduce('v_add_f32', tmp3, tmp2)
    a(f'v_mul_f32 v{tmp3}, {hex(f2u(1/512))}, v{tmp3}')
    ln_scalars(tmp, tmp3, tmp2)
    for i in range(8): a(f'v_sub_f32 v{X+i}, v{X+i}, v{tmp}')
    rnd_pairs(list(range(X, X+8)), T)
    for i in range(8): div_nr(X+i, tmp3, tmp2, T)
    rnd_pairs(list(range(X, X+8)), T)
def ln_scalars(mean, var, rcp):
    rnd1(mean, mean); rnd1(var, var)
    a(f'v_add_f32 v{var}, {hex(f2u(1e-5))}, v{var}')
    rnd1(var, var)
    a(f'v_sqrt_f32 v{var}, v{var}')
    rnd1(var, var)
    a(f'v_rcp_f32 v{rcp}, v{var}')
def div_nr(x, den, rcp, t):
    a(f'''v_mul_f32 v{t}, v{x}, v{rcp}
v_fma_f32 v{x}, -v{t}, v{den}, v{x}
v_fma_f32 v{x}, v{x}, v{rcp}, v{t}''')

def gemv_core(AF, F, ACC):
    for dd in range(8):
        a(f'v_mfma_f32_16x16x32_bf16 {vr(ACC+4*dd,4)}, {vr(AF,4)}, {vr(F+4*dd,4)}, 0')
def gemv_write_r4(ACC, vaddr):
    a('s_mov_b32 exec_lo, 0x00F0000F\ns_mov_b32 exec_hi, 0xF0000F00')
    for dd in range(0, 8, 2):
        a(f'ds_write2_b32 v{vaddr}, v{ACC+4*dd}, v{ACC+4*dd+4} offset0:{20*dd} offset1:{20*dd+20}')
    a('s_mov_b64 exec, -1')
def gemv_reduce(dst, T, vaddr):
    for i in range(4): a(f'ds_read_b128 {vr(T+4*i,4)}, v{vaddr} offset:{16*i}')
    a('s_waitcnt lgkmcnt(0)')
    a(f'v_pk_add_f32 {vr(T,2)}, {vr(T,2)}, {vr(T+2,2)}\nv_pk_add_f32 {vr(T+4,2)}, {vr(T+4,2)}, {vr(T+6,2)}')
    a(f'v_pk_add_f32 {vr(T+8,2)}, {vr(T+8,2)}, {vr(T+10,2)}\nv_pk_add_f32 {vr(T+12,2)}, {vr(T+12,2)}, {vr(T+14,2)}')
    a(f'v_pk_add_f32 {vr(T,2)}, {vr(T,2)}, {vr(T+4,2)}\nv_pk_add_f32 {vr(T+8,2)}, {vr(T+8,2)}, {vr(T+12,2)}')
    a(f'v_pk_add_f32 {vr(T,2)}, {vr(T,2)}, {vr(T+8,2)}\nv_add_f32 v{dst}, v{T}, v{T+1}')
def quad_gather(x, y1, y2, y3):
    a(f'''v_mov_b32_dpp v{y1}, v{x} quad_perm:[1,1,1,1] {DPPM}
v_mov_b32_dpp v{y2}, v{x} quad_perm:[2,2,2,2] {DPPM}
v_mov_b32_dpp v{y3}, v{x} quad_perm:[3,3,3,3] {DPPM}''')

hdr = open('cdna_kernels/' + NAME + '.s.ref').read().split('; Override')[0]
LDS = 32768
a.raw(hdr.rstrip('\n'))
a.raw(f'; @launch grid=(256,1,1) block=(576,1,1) lds={LDS}')
a.raw(f'''.amdgcn_target "amdgcn-amd-amdhsa--gfx950"
.text
.globl {NAME}_kernel
.p2align 8
.type {NAME}_kernel,@function
{NAME}_kernel:''')
stamp(0)
a(f'''s_load_dwordx16 s[4:19], s[0:1], 0
s_load_dwordx8 s[20:27], s[0:1], 64
s_load_dwordx4 s[28:31], s[0:1], 96
s_cmp_ge_u32 s2, 256
s_cbranch_scc1 L_exit
v_lshrrev_b32 v4, 6, v0
v_and_b32 v1, 63, v0
v_readfirstlane_b32 {WV}, v4
v_and_b32 v2, 15, v0
v_lshrrev_b32 v3, 4, v1
s_mov_b32 {PLO}, 0x05040100
s_mov_b32 {PHI}, 0x07060302
s_mov_b32 {MSK}, 0xffff0000
s_mov_b32 {PK0}, 0x07060501
s_mov_b32 {PK1}, 0x07060502
s_mov_b32 {PK2}, 0x07060503
s_mov_b32 {UP0}, 0x0c04000c
s_mov_b32 {UP1}, 0x04020100
s_mov_b32 {CNT}, 300000
s_waitcnt lgkmcnt(0)
s_load_dword {EP}, s[{S_WS}:{S_WS+1}], 0''')
srd(WS, S_WS, WSN)
stamp(1)
a(f'''s_cmp_lt_u32 s2, 96
s_cbranch_scc1 L_notattn
s_cmp_lt_u32 s2, 224
s_cbranch_scc1 L_attn
L_notattn:
s_cmp_eq_u32 {WV}, 8
s_cbranch_scc1 L_exit
s_cmp_lt_u32 s2, 32
s_cbranch_scc1 L_roleA
s_cmp_lt_u32 s2, 96
s_cbranch_scc1 L_roleB
s_sub_u32 {ID}, s2, 224
s_branch L_ffn''')
def get_tag():
    a(f'''s_waitcnt lgkmcnt(0)
s_mul_i32 {TAG}, {EP}, 0x9E3779B1
s_add_u32 {TAG}, {TAG}, 0x7F4A7C15''')

PB = 0
def r4_geom(vrow, vnl, vP, vchunk_own, vchunk_all):
    a(f'''s_and_b32 {T2}, {WV}, 3
s_lshr_b32 {T3}, {WV}, 2
v_lshrrev_b32 v5, 2, v2
v_and_b32 v6, 3, v2
v_lshl_add_u32 v7, v5, 2, v3
s_lshl_b32 {T0}, {T2}, 4
v_add_u32 v{vchunk_own}, {T0}, v7
v_lshlrev_b32 v{vrow}, 3, v{vchunk_own}
v_lshlrev_b32 v{vnl}, 4, v6
v_add_u32 v8, {T2}, v6
v_and_b32 v8, 3, v8
v_lshl_add_u32 v{vchunk_all}, v8, 4, v7
s_mul_i32 {T0}, {T3}, {32*80}
s_lshl_b32 {T1}, {T2}, 4
s_add_u32 {T0}, {T0}, {T1}
v_mul_u32_u24 v{vP}, {8*80}, v6
v_lshl_add_u32 v{vP}, v5, 2, v{vP}
v_add_u32 v{vP}, {T0}, v{vP}''')

L_, F_, ACC_, AF_ = 32, 64, 96, 28
def mod_role(first):
    skip = newlab('modskip'); skip2 = newlab('modskip2')
    a(f's_cmp_ge_u32 {WV}, 4\ns_cbranch_scc1 {skip}')
    srd(RA, S_WM, 512*6144); srd(RB, S_C, 1024)
    r4_geom(10, 11, 12, 13, 14)
    a(f'''v_lshlrev_b32 v15, 4, v13
buffer_load_dwordx4 v[16:19], v15, {RB}, 0 offen
s_movk_i32 {T1}, 6144
v_mul_lo_u32 v15, v10, {T1}
s_lshl_b32 {T1}, {ID}, 6
v_add3_u32 v15, v15, v11, {T1}''')
    load_tile(L_, 15, RA, 6144)
    a('s_waitcnt vmcnt(8)')
    unpack(20, 16, 4)
    for i in range(8):
        a(f'v_mul_f32 v{F_+i}, {hex(LOG2E ^ 0x80000000)}, v{20+i}')
    for i in range(8): a(f'v_exp_f32 v{F_+i}, v{F_+i}')
    for i in range(8): a(f'v_add_f32 v{F_+i}, 1.0, v{F_+i}')
    for i in range(8): a(f'v_rcp_f32 v{F_+i}, v{F_+i}')
    for i in range(8): a(f'v_mul_f32 v{20+i}, v{20+i}, v{F_+i}')
    for i in range(4): a(f'v_cvt_pk_bf16_f32 v{AF_+i}, v{20+2*i}, v{21+2*i}')
    a('s_waitcnt vmcnt(0)')
    if first: stamp(2)
    perm_tile(F_, L_)
    gemv_core(AF_, F_, ACC_)
    gemv_write_r4(ACC_, 12)
    a(f'{skip}:')
    if first: get_tag()
    a('s_waitcnt lgkmcnt(0)\ns_barrier')
    a(f's_cmp_lg_u32 {WV}, 0\ns_cbranch_scc1 {skip2}')
    a(f'v_mul_u32_u24 v15, 80, v1')
    gemv_reduce(20, L_, 15)
    quad_gather(20, 21, 22, 23)
    a(f'''v_cvt_pk_bf16_f32 v24, v20, v21
v_cvt_pk_bf16_f32 v25, v22, v23
v_mov_b32 v26, {TAG}
v_mov_b32 v27, {TAG}
s_lshl_b32 {T0}, {ID}, 7
s_add_u32 {T0}, {T0}, {MODB}
v_lshlrev_b32 v15, 2, v1
s_mov_b32 exec_lo, 0x11111111
s_mov_b32 exec_hi, 0
buffer_store_dwordx4 v[24:27], v15, {WS}, {T0} offen sc1
s_mov_b64 exec, -1''')
    a(f'{skip2}:')

a('L_roleA:')
a(f's_mov_b32 {ID}, s2')
mod_role(True)
stamp(3)
a(f'''s_cmp_ge_u32 s2, 24
s_cbranch_scc1 L_end
s_add_u32 {ID}, s2, 32
s_barrier
s_branch L_ffn_notag''')

a('L_roleB:')
a(f's_sub_u32 {ID}, s2, 32')
srd(RA, S_WQ, 512*8192); srd(RB, S_X, 1024)
r4_geom(10, 11, 12, 13, 14)
a(f'''v_lshlrev_b32 v15, 4, v14
buffer_load_dwordx4 v[16:19], v15, {RB}, 0 offen
v_lshlrev_b32 v9, 13, v10
s_lshl_b32 {T1}, {ID}, 7
s_lshl_b32 {T0}, {T3}, 6
s_add_u32 {T1}, {T1}, {T0}
v_add3_u32 v9, v9, v11, {T1}''')
load_tile(L_, 9, RA, 8192)
a('s_waitcnt vmcnt(8)')
unpack(20, 16, 4)
layernorm8(20, F_, 5, 6, 7)
a('s_waitcnt vmcnt(0)')
stamp(2)
perm_tile(F_, L_)
get_tag()
a(f'v_lshlrev_b32 v15, 5, v14\ns_mov_b32 {T4}, {MODB}')
poll([(L_, 15, T4, 0), (L_+4, 15, T4, 16), (L_+8, 15, T4, 2048), (L_+12, 15, T4, 2064)])
stamp(3)
for i, src in enumerate([L_, L_+1, L_+4, L_+5]): unpack(L_+16+2*i, src, 1)
for i, src in enumerate([L_+8, L_+9, L_+12, L_+13]): unpack(ACC_+2*i, src, 1)
for i in range(8): a(f'v_add_f32 v{ACC_+i}, 1.0, v{ACC_+i}')
rnd_pairs(list(range(ACC_, ACC_+8)), 5)
for i in range(8): a(f'v_mul_f32 v{20+i}, v{20+i}, v{ACC_+i}')
rnd_pairs(list(range(20, 28)), 5)
for i in range(8): a(f'v_add_f32 v{20+i}, v{20+i}, v{L_+16+i}')
for i in range(4): a(f'v_cvt_pk_bf16_f32 v{AF_+i}, v{20+2*i}, v{21+2*i}')
gemv_core(AF_, F_, ACC_)
gemv_write_r4(ACC_, 12)
a('s_waitcnt lgkmcnt(0)\ns_barrier')
a(f's_cmp_lg_u32 {WV}, 0\ns_cbranch_scc1 L_B_skip')
a(f'v_mul_u32_u24 v15, 80, v1')
gemv_reduce(20, L_, 15)
quad_gather(20, 21, 22, 23)
a(f'''v_cvt_pk_bf16_f32 v24, v20, v21
v_cvt_pk_bf16_f32 v25, v22, v23
v_mov_b32 v26, {TAG}
v_mov_b32 v27, {TAG}
s_lshl_b32 {T0}, {ID}, 8
s_add_u32 {T0}, {T0}, {QB}
v_lshlrev_b32 v15, 2, v1
s_mov_b32 exec_lo, 0x11111111
s_mov_b32 exec_hi, 0x11111111
buffer_store_dwordx4 v[24:27], v15, {WS}, {T0} offen sc1
s_mov_b64 exec, -1
L_B_skip:''')
stamp(4)
a(f's_barrier\ns_add_u32 {ID}, {ID}, 32')
mod_role(False)
stamp(5)
a(f'''s_sub_u32 {ID}, {ID}, 32
s_cmp_lg_u32 {WV}, 0
s_cbranch_scc1 L_end
s_cmp_ge_u32 {ID}, 32
s_cbranch_scc1 L_end''')
srd(RA, S_X, 1024); srd(RB, S_OUT, 1024)
a(f'''v_and_b32 v5, 3, v1
v_lshrrev_b32 v6, 2, v1
s_lshl_b32 {T0}, {ID}, 2
v_add_u32 v5, {T0}, v5
v_lshlrev_b32 v7, 3, v5
buffer_load_dwordx2 v[10:11], v7, {RA}, 0 offen
v_lshlrev_b32 v8, 4, v5
v_lshl_add_u32 v9, v6, 11, v8
s_mov_b32 {T4}, {MODB + 256*16}
s_mov_b32 {T2}, {MODB + 640*16}
s_mov_b32 {T3}, {APB}''')
poll([(12, 8, T4, 0), (16, 8, T2, 0), (20, 9, T3, 0)], sleep=2)
stamp(6)
unpack24(20)
def red16(base):
    for c in ('row_ror:4', 'row_ror:8'):
        for i in range(4): a(f'v_add_f32_dpp v{base+i}, v{base+i}, v{base+i} {c} {DPPM}')
    for sw in ('v_permlane16_swap_b32', 'v_permlane32_swap_b32'):
        for i in range(4): a(f'v_mov_b32 v{40+i}, v{base+i}')
        for i in range(4): a(f'{sw} v{base+i}, v{40+i}')
        for i in range(4): a(f'v_add_f32 v{base+i}, v{base+i}, v{40+i}')
red16(20)
rnd_pairs([20, 21, 22, 23], 5)
unpack(24, 12, 2)
unpack(28, 16, 2)
unpack(32, 10, 2)
for i in range(4): a(f'v_mul_f32 v{20+i}, v{20+i}, v{24+i}')
rnd_pairs([20, 21, 22, 23], 5)
for i in range(4): a(f'v_add_f32 v{20+i}, v{20+i}, v{32+i}')
rnd_pairs([20, 21, 22, 23], 5)
a(f'''s_mov_b32 {T4}, {FPB}
s_mov_b32 {T2}, {FPB + 16*2048}
s_mov_b32 {T3}, {FPB + 32*2048}
s_mov_b32 {T1}, {FPB + 48*2048}
v_and_b32 v12, 7, v6
v_lshl_add_u32 v12, v12, 11, v8
v_mov_b32 v13, {T1}
v_add_u32 v12, v12, v13''')
poll([(48, 9, T4, 0), (52, 9, T2, 0), (56, 9, T3, 0), (60, 12, '0', 0)])
stamp(7)
for b in (48, 52, 56, 60): unpack24(b)
a('s_mov_b32 exec_lo, 0\ns_mov_b32 exec_hi, -1')
for i in range(4): a(f'v_mov_b32 v{60+i}, 0')
a('s_mov_b64 exec, -1')
for i in range(4): a(f'v_add_f32 v{48+i}, v{48+i}, v{52+i}\nv_add_f32 v{56+i}, v{56+i}, v{60+i}')
for i in range(4): a(f'v_add_f32 v{48+i}, v{48+i}, v{56+i}')
red16(48)
rnd_pairs([48, 49, 50, 51], 5)
for i in range(4): a(f'v_mul_f32 v{48+i}, v{48+i}, v{28+i}')
rnd_pairs([48, 49, 50, 51], 5)
for i in range(4): a(f'v_add_f32 v{48+i}, v{48+i}, v{20+i}')
if SCALE_OUT is not None:
    for i in range(4): a(f'v_mul_f32 v{48+i}, {hex(f2u(SCALE_OUT))}, v{48+i}')
a(f'''v_cvt_pk_bf16_f32 v52, v48, v49
v_cvt_pk_bf16_f32 v53, v50, v51
s_mov_b64 exec, 15
buffer_store_dwordx2 v[52:53], v7, {RB}, 0 offen
s_cmp_lg_u32 {ID}, 0
s_cbranch_scc1 L_red_done
s_mov_b64 exec, 1
s_add_u32 {T0}, {EP}, 1
v_mov_b32 v5, 0
v_mov_b32 v6, {T0}
buffer_store_dword v6, v5, {WS}, 0 offen sc1
L_red_done:
s_mov_b64 exec, -1''')
stamp(8)
a('s_branch L_end')

a('L_ffn:')
get_tag()
a('L_ffn_notag:')
r4_geom(10, 11, 12, 13, 14)
a(f'v_lshlrev_b32 v15, 8, v1\ns_mov_b32 {T4}, {QB}')
poll([(16, 15, T4, 0)], sleep=4)
stamp(4)
a(f'''s_cmp_lt_u32 {WV}, 4
s_cselect_b32 s36, s{S_WG}, s{S_WU}
s_cselect_b32 s37, s{S_WG+1}, s{S_WU+1}
s_mov_b32 s38, {512*3584}
s_mov_b32 s39, 0x20000
s_movk_i32 {T1}, 3584
v_mul_lo_u32 v15, v10, {T1}
s_lshl_b32 {T1}, {ID}, 6
v_add3_u32 v15, v15, v11, {T1}''')
load_tile(L_, 15, RA, 3584)
L2_, F2_ = 96, 128
srd(RB, S_WD, 1792*1024); srd(RC, S_X, 1024)
a(f'''s_cmp_ge_u32 {WV}, 4
s_cbranch_scc1 L_ffn_nodown
s_lshl_b32 {T1}, {ID}, 15
s_lshl_b32 {T0}, {WV}, 8
s_add_u32 {T1}, {T1}, {T0}
v_lshlrev_b32 v15, 13, v3
v_lshl_add_u32 v15, v2, 4, v15
v_add_u32 v15, {T1}, v15''')
load_tile(L2_, 15, RB, 1024)
a('L_ffn_nodown:')
a(f'''s_lshl_b32 {T0}, {WV}, 4
v_add_u32 v16, {T0}, v2
v_lshl_add_u32 v17, v16, 2, v3
v_lshlrev_b32 v18, 1, v17
buffer_load_ushort v19, v18, {RC}, 0 offen
v_lshlrev_b32 v20, 4, v16
s_mov_b32 {T4}, {MODB + 256*16}''')
poll([(128, 20, T4, 0), (132, 20, T4, 2048)], sleep=2)
a(f's_mov_b32 {T4}, {MODB + 512*16}')
poll([(136, 20, T4, 0)], sleep=2)
stamp(5)
a(f'''v_cmp_gt_u32 vcc, 2, v3
v_and_b32 v21, 1, v3
v_cmp_eq_u32 {TP}, 0, v21
v_cndmask_b32 v128, v129, v128, vcc
v_cndmask_b32 v132, v133, v132, vcc
v_cndmask_b32 v136, v137, v136, vcc''')
for b, d in ((128, 160), (132, 161), (136, 162)):
    a(f'v_lshlrev_b32 v{b+1}, 16, v{b}\nv_and_b32 v{b}, {MSK}, v{b}\nv_cndmask_b32 v{d}, v{b}, v{b+1}, {TP}')
a(f'v_lshlrev_b32 v19, 16, v19\nv_add_f32 v162, 1.0, v162')
rnd1(162, 162)
perm_tile(F_, L_)
a(f's_cmp_ge_u32 {WV}, 4\ns_cbranch_scc1 L_ffn_noperm2')
perm_tile(F2_, L2_)
a('L_ffn_noperm2:')
a(f'v_lshl_add_u32 v21, v3, 13, v20\ns_mov_b32 {T4}, {APB}\ns_mov_b32 {T2}, {APB+4096}')
ST = 8192
H2 = 8448
TT = 9472
a(f'''v_lshlrev_b32 v22, 4, v13
s_lshl_b32 {T0}, {WV}, 3
v_lshrrev_b32 v23, 1, v3
v_and_b32 v24, 1, v3
v_lshlrev_b32 v23, 6, v23
v_lshl_add_u32 v23, v24, 2, v23
v_add_u32 v23, {T0}, v23
v_lshrrev_b32 v24, 5, v1
v_lshlrev_b32 v24, 6, v24
v_lshl_add_u32 v24, v2, 2, v24''')
poll([(L_, 21, T4, 0), (L_+4, 21, T4, 2048), (L_+8, 21, T2, 0), (L_+12, 21, T2, 2048)])
stamp(6)
for i in range(4): unpack24(L_+4*i)
a(f'''v_pk_add_f32 {vr(L_,2)}, {vr(L_,2)}, {vr(L_+4,2)}
v_pk_add_f32 {vr(L_+2,2)}, {vr(L_+2,2)}, {vr(L_+6,2)}
v_pk_add_f32 {vr(L_+8,2)}, {vr(L_+8,2)}, {vr(L_+12,2)}
v_pk_add_f32 {vr(L_+10,2)}, {vr(L_+10,2)}, {vr(L_+14,2)}
v_pk_add_f32 {vr(L_,2)}, {vr(L_,2)}, {vr(L_+8,2)}
v_pk_add_f32 {vr(L_+2,2)}, {vr(L_+2,2)}, {vr(L_+10,2)}
v_permlane32_swap_b32 v{L_}, v{L_+2}
v_permlane32_swap_b32 v{L_+1}, v{L_+3}
v_add_f32 v{L_}, v{L_}, v{L_+2}
v_add_f32 v{L_+1}, v{L_+1}, v{L_+3}
v_permlane16_swap_b32 v{L_}, v{L_+1}
v_add_f32 v25, v{L_}, v{L_+1}''')
rnd1(25, 25)
a('v_mul_f32 v25, v25, v160'); rnd1(25, 25)
a('v_add_f32 v25, v25, v19'); rnd1(25, 25)
a(f'''v_mov_b32 v26, v25
v_mul_f32 v27, v25, v25
v_permlane32_swap_b32 v26, v27
v_add_f32 v26, v26, v27''')
for c in ('quad_perm:[1,0,3,2]', 'quad_perm:[2,3,0,1]', 'row_half_mirror', 'row_mirror'):
    a(f'v_add_f32_dpp v26, v26, v26 {c} {DPPM}')
a(f'''s_mov_b32 exec_lo, 0x00010001
s_mov_b32 exec_hi, 0x00010001
ds_write_b32 v23, v26 offset:{ST}
s_mov_b64 exec, -1
s_waitcnt lgkmcnt(0)
s_barrier
ds_read_b32 v26, v24 offset:{ST}
s_waitcnt lgkmcnt(0)''')
for c in ('quad_perm:[1,0,3,2]', 'quad_perm:[2,3,0,1]', 'row_half_mirror', 'row_mirror'):
    a(f'v_add_f32_dpp v26, v26, v26 {c} {DPPM}')
a(f'''v_mul_f32 v26, {hex(f2u(1/512))}, v26
v_mov_b32 v27, v26
v_permlane32_swap_b32 v26, v27
v_fma_f32 v27, -v26, v26, v27
v_max_f32 v27, 0, v27''')
ln_scalars(26, 27, 5)
a('v_sub_f32 v25, v25, v26'); rnd1(25, 25)
div_nr(25, 27, 5, 6); rnd1(25, 25)
a('v_mul_f32 v25, v25, v162'); rnd1(25, 25)
a(f'''v_add_f32 v25, v25, v161
v_cvt_pk_bf16_f32 v25, v25, v25
ds_write_b16 v18, v25 offset:{H2}
s_waitcnt lgkmcnt(0)
s_barrier
ds_read_b128 {vr(AF_,4)}, v22 offset:{H2}
s_waitcnt lgkmcnt(0)''')
stamp(7)
gemv_core(AF_, F_, ACC_)
gemv_write_r4(ACC_, 12)
a('s_waitcnt lgkmcnt(0)\ns_barrier')
a(f's_cmp_ge_u32 {WV}, 4\ns_cbranch_scc1 L_end')
a(f'v_mul_u32_u24 v15, 80, v1')
gemv_reduce(20, L_, 15)
rnd1(20, 20)
K1 = -2 * 0.7978845608028654 * 1.4426950408889634
a(f'''v_mov_b32 v21, v20
v_permlane32_swap_b32 v20, v21
v_mul_f32 v22, v20, v20
v_mov_b32 v23, {hex(f2u(K1))}
v_mov_b32 v24, {hex(f2u(K1*0.044715))}
v_fma_f32 v22, v22, v24, v23
v_mul_f32 v22, v22, v20
v_exp_f32 v22, v22
v_add_f32 v22, 1.0, v22
v_rcp_f32 v22, v22
v_mul_f32 v20, v20, v22''')
rnd1(20, 20)
a(f'''v_mul_f32 v20, v20, v21
v_cvt_pk_bf16_f32 v20, v20, v20
s_lshl_b32 {T0}, {WV}, 7
v_lshl_add_u32 v21, v1, 1, {T0}
v_lshl_add_u32 v22, v3, 4, {T0}
ds_write_b16 v21, v20 offset:{TT}
s_waitcnt lgkmcnt(0)
ds_read_b128 {vr(AF_,4)}, v22 offset:{TT}
s_waitcnt lgkmcnt(0)''')
gemv_core(AF_, F2_, ACC_)
a(f'''v_cmp_gt_u32 vcc, 16, v1
s_lshl_b32 {T0}, {ID}, 11
s_lshl_b32 {T1}, {WV}, 9
s_add_u32 {T0}, {T0}, {T1}
s_add_u32 {T0}, {T0}, {FPB}
v_lshlrev_b32 v15, 5, v2
v_lshl_add_u32 v15, v3, 4, v15''')
for i in range(4): a(f'v_cndmask_b32 v{20+i}, v{ACC_+16+4*i}, v{ACC_+4*i}, vcc')
pack24(24, 20, 21, 22, 23)
a(f'''s_mov_b32 exec_hi, 0
buffer_store_dwordx4 v[24:27], v15, {WS}, {T0} offen sc1
s_mov_b64 exec, -1''')
stamp(8)
a('s_branch L_end')

QL = 0; OL = 1024; OW = 2112; MLL = OL + 8*OW; DP = MLL + 256
a('L_attn:')
a(f'''s_sub_u32 {ID}, s2, 96
s_and_b32 {T2}, {ID}, 7
s_lshr_b32 {T3}, {ID}, 3
s_cmp_eq_u32 {WV}, 8
s_cbranch_scc1 L_comm''')
srd(RA, S_K, 0x8000000); srd(RB, S_V, 0x8000000)
KF, VL, VF, SC, PF, OA = 32, 64, 32, 16, 24, 96
a(f'''s_lshl_b32 {T0}, {T2}, 24
s_lshl_b32 {T1}, {T3}, 16
s_add_u32 {T0}, {T0}, {T1}
s_lshl_b32 {T1}, {WV}, 13
s_add_u32 {T0}, {T0}, {T1}
s_add_u32 {T4}, {T0}, {61440*256}
s_add_u32 {T1}, {T4}, 4096
v_and_b32 v5, 3, v2
v_lshrrev_b32 v6, 2, v2
v_lshl_add_u32 v5, v5, 2, v6
v_lshlrev_b32 v5, 8, v5
v_lshl_add_u32 v5, v3, 4, v5
v_lshlrev_b32 v6, 4, v1''')
for T in range(2):
    for kk in range(4):
        a(f'buffer_load_dwordx4 {vr(KF+16*T+4*kk,4)}, v5, {RA}, {T4 if T==0 else T1} offen offset:{64*kk} nt')
for j in range(8):
    a(f'buffer_load_dwordx4 {vr(VL+4*j,4)}, v6, {RB}, {T4 if j<4 else T1} offen offset:{1024*(j&3)} nt')
stamp(2)
a(f'''v_and_b32 v7, 3, v2
v_lshlrev_b32 v7, 8, v7
v_lshl_add_u32 v7, v3, 4, v7
s_mul_i32 {T0}, {WV}, {OW}
v_mul_u32_u24 v8, 528, v2
v_lshl_add_u32 v8, v3, 7, v8
v_add_u32 v8, {T0}, v8
s_lshl_b32 {T0}, {WV}, 3
v_lshl_add_u32 v9, v2, 6, {T0}''')
srd(RC, S_WO, 4096*1024)
JJ = 's66'; CB = 's67'; HG = 's68'
a(f'''s_and_b32 {T0}, {T3}, 1
s_lshl_b32 {JJ}, {T2}, 1
s_add_u32 {JJ}, {JJ}, {T0}
s_lshr_b32 {CB}, {ID}, 4
s_lshr_b32 {T0}, {WV}, 2
s_lshl_b32 {HG}, {JJ}, 1
s_add_u32 {HG}, {HG}, {T0}
v_lshrrev_b32 v10, 3, v2
v_lshl_add_u32 v10, v10, 2, v3
v_lshlrev_b32 v10, 10, v10
v_and_b32 v11, 7, v2
v_lshl_add_u32 v10, v11, 4, v10
s_lshl_b32 {T0}, {JJ}, 18
s_lshl_b32 {T1}, {WV}, 15
s_add_u32 {T0}, {T0}, {T1}
s_lshl_b32 {T1}, {CB}, 7
s_add_u32 {T0}, {T0}, {T1}
v_add_u32 v10, {T0}, v10''')
get_tag()
a('s_barrier')
stamp(3)
WL, WF = 132, 148
load_tile(WL, 10, RC, 8192, nl=4)
for kk in range(4): a(f'ds_read_b128 {vr(OA+4*kk,4)}, v7 offset:{QL+64*kk}')
a('s_waitcnt vmcnt(12) lgkmcnt(0)')
stamp(4)
for T in range(2):
    for kk in range(4):
        a(f'v_mfma_f32_16x16x32_bf16 {vr(SC+4*T,4)}, {vr(KF+16*T+4*kk,4)}, {vr(OA+4*kk,4)}, {"0" if kk==0 else vr(SC+4*T,4)}')
S8 = list(range(SC, SC+8))
rnd_pairs(S8, 5)
for r in S8: a(f'v_mul_f32 v{r}, {hex(f2u(128**-0.5))}, v{r}')
rnd_pairs(S8, 5)
a(f'''v_max3_f32 v12, v{SC}, v{SC+1}, v{SC+2}
v_max3_f32 v13, v{SC+3}, v{SC+4}, v{SC+5}
v_max3_f32 v12, v12, v{SC+6}, v{SC+7}
v_max_f32 v12, v12, v13
v_mov_b32 v13, v12
v_permlane16_swap_b32 v12, v13
v_max_f32 v12, v12, v13
v_mov_b32 v13, v12
v_permlane32_swap_b32 v12, v13
v_max_f32 v12, v12, v13''')
for r in S8: a(f'v_sub_f32 v{r}, v{r}, v12')
for r in S8: a(f'v_mul_f32 v{r}, {hex(LOG2E)}, v{r}')
for r in S8: a(f'v_exp_f32 v{r}, v{r}')
for i in range(4): a(f'v_cvt_pk_bf16_f32 v{PF+i}, v{SC+2*i}, v{SC+2*i+1}')
for i in range(4): a(f'v_mov_b32 v{28+i}, 0x3f803f80')
a('s_waitcnt vmcnt(4)')
stamp(5)
perm_tile(VF, VL)
for dd in range(8):
    a(f'v_mfma_f32_16x16x32_bf16 {vr(OA+4*dd,4)}, {vr(VF+4*dd,4)}, {vr(PF,4)}, 0')
a(f'v_mfma_f32_16x16x32_bf16 {vr(OA+32,4)}, v[28:31], {vr(PF,4)}, 0')
a('s_mov_b32 exec_lo, 0x000F000F\ns_mov_b32 exec_hi, 0x000F000F')
for dd in range(8):
    a(f'ds_write_b128 v8, {vr(OA+4*dd,4)} offset:{OL+16*dd}')
a(f'''s_mov_b64 exec, 15
ds_write2_b32 v9, v12, v{OA+32} offset0:{0} offset1:{1}''' .replace('v9,', 'v14,') if False else 's_mov_b64 exec, 15')
a(f'''v_add_u32 v14, {MLL}, v9
ds_write2_b32 v14, v12, v{OA+32} offset0:0 offset1:1
s_mov_b64 exec, -1
s_waitcnt lgkmcnt(0)
s_barrier''')
stamp(6)
a(f'''s_cmp_ge_u32 {WV}, 3
s_cbranch_scc1 L_attn_D
s_cmp_eq_u32 {WV}, 2
s_cbranch_scc1 L_attn_ml
v_lshrrev_b32 v12, 5, v1
s_lshl_b32 {T0}, {WV}, 1
v_add_u32 v12, {T0}, v12
v_and_b32 v13, 7, v1
v_lshlrev_b32 v14, 6, v12
v_lshl_add_u32 v14, v13, 3, v14
ds_read_b32 v15, v14 offset:{MLL}
v_mul_u32_u24 v16, 528, v12
v_and_b32 v17, 31, v1
v_lshl_add_u32 v16, v17, 4, v16''')
for w in range(8): a(f'ds_read_b128 {vr(KF+4*w,4)}, v16 offset:{OL+OW*w}')
a(f'''s_lshl_b32 {T0}, {T2}, 15
s_lshl_b32 {T1}, {T3}, 9
s_add_u32 {T0}, {T0}, {T1}
s_add_u32 {T0}, {T0}, {OPB}
v_lshlrev_b32 v18, 13, v12
v_lshl_add_u32 v18, v17, 4, v18
s_waitcnt lgkmcnt(8)
v_max_f32_dpp v19, v15, v15 row_ror:1 {DPPM}
v_max_f32_dpp v19, v19, v19 row_ror:2 {DPPM}
v_max_f32_dpp v19, v19, v19 row_ror:4 {DPPM}
v_sub_f32 v15, v15, v19
v_mul_f32 v15, {hex(LOG2E)}, v15
v_exp_f32 v15, v15
s_waitcnt lgkmcnt(0)''')
for i in range(4): a(f'v_mul_f32_dpp v{20+i}, v15, v{KF+i} row_newbcast:0 {DPPM}')
for w in range(1, 8):
    for i in range(4): a(f'v_fmac_f32_dpp v{20+i}, v15, v{KF+4*w+i} row_newbcast:{w} {DPPM}')
pack24(24, 20, 21, 22, 23)
a(f'''buffer_store_dwordx4 v[24:27], v18, {WS}, {T0} offen sc1
s_branch L_attn_D
L_attn_ml:
v_and_b32 v13, 7, v1
v_lshlrev_b32 v14, 6, v3
v_lshl_add_u32 v14, v13, 3, v14
ds_read_b64 v[16:17], v14 offset:{MLL}
s_lshl_b32 {T0}, {T2}, 10
s_lshl_b32 {T1}, {T3}, 4
s_add_u32 {T0}, {T0}, {T1}
s_add_u32 {T0}, {T0}, {MLB}
v_lshlrev_b32 v18, 8, v3
s_waitcnt lgkmcnt(0)
v_max_f32_dpp v24, v16, v16 row_ror:1 {DPPM}
v_max_f32_dpp v24, v24, v24 row_ror:2 {DPPM}
v_max_f32_dpp v24, v24, v24 row_ror:4 {DPPM}
v_sub_f32 v16, v16, v24
v_mul_f32 v16, {hex(LOG2E)}, v16
v_exp_f32 v16, v16
v_mul_f32 v25, v16, v17
v_add_f32_dpp v25, v25, v25 row_ror:1 {DPPM}
v_add_f32_dpp v25, v25, v25 row_ror:2 {DPPM}
v_add_f32_dpp v25, v25, v25 row_ror:4 {DPPM}
v_mov_b32 v26, {TAG}
v_mov_b32 v27, {TAG}
s_mov_b32 exec_lo, 0x00010001
s_mov_b32 exec_hi, 0x00010001
buffer_store_dwordx4 v[24:27], v18, {WS}, {T0} offen sc1
s_mov_b64 exec, -1
L_attn_D:''')
stamp(7)
a(f'''v_and_b32 v12, 3, v2
v_lshrrev_b32 v13, 3, v2
v_lshl_add_u32 v12, v13, 2, v12
v_bfe_u32 v13, v2, 2, 1
v_lshl_add_u32 v13, v13, 2, v3
v_lshlrev_b32 v14, 10, v12
v_lshl_add_u32 v14, v13, 4, v14
v_lshlrev_b32 v15, 5, v12
s_lshl_b32 {T0}, {HG}, 13
s_and_b32 {T1}, {WV}, 3
s_lshl_b32 {T1}, {T1}, 7
s_add_u32 {T4}, {T0}, {T1}
s_add_u32 {T4}, {T4}, {OPB}
s_lshl_b32 {T2}, {HG}, 8
s_add_u32 {T2}, {T2}, {MLB}
v_and_b32 v16, 7, v2
v_mul_u32_u24 v16, 640, v16
v_lshrrev_b32 v17, 3, v2
v_lshl_add_u32 v16, v17, 2, v16
s_lshl_b32 {T0}, {WV}, 3
s_add_u32 {T0}, {T0}, {DP}
v_add_u32 v16, {T0}, v16
s_waitcnt vmcnt(0)''')
perm_tile(WF, WL, nl=4)
poll([(32, 14, T4, 0), (36, 14, T4, 512), (40, 15, T2, 0), (44, 15, T2, 16)])
stamp(8)
unpack24(32); unpack24(36)
RED3 = ('quad_perm:[1,0,3,2]', 'quad_perm:[2,3,0,1]', 'row_ror:8')
a('v_max_f32 v18, v40, v44')
for c in RED3: a(f'v_max_f32_dpp v18, v18, v18 {c} {DPPM}')
a(f'''v_sub_f32 v40, v40, v18
v_sub_f32 v44, v44, v18
v_mul_f32 v40, {hex(LOG2E)}, v40
v_mul_f32 v44, {hex(LOG2E)}, v44
v_exp_f32 v40, v40
v_exp_f32 v44, v44
v_mul_f32 v48, v40, v41
v_fmac_f32 v48, v44, v45''')
for i in range(4): a(f'v_mul_f32 v{32+i}, v40, v{32+i}')
for i in range(4): a(f'v_fmac_f32 v{32+i}, v44, v{36+i}')
for c in RED3:
    for r in (48, 32, 33, 34, 35): a(f'v_add_f32_dpp v{r}, v{r}, v{r} {c} {DPPM}')
a('v_rcp_f32 v48, v48')
for i in range(4): a(f'v_mul_f32 v{32+i}, v48, v{32+i}')
a('v_cvt_pk_bf16_f32 v36, v32, v33\nv_cvt_pk_bf16_f32 v37, v34, v35')
for dd in range(8):
    a(f'v_mfma_f32_16x16x16_bf16 {vr(OA+4*dd,4)}, v[36:37], {vr(WF+2*dd,2)}, 0')
a('s_mov_b32 exec_lo, 0xFF0000FF\ns_mov_b32 exec_hi, 0')
for dd in range(0, 8, 2):
    a(f'ds_write2_b32 v16, v{OA+4*dd}, v{OA+4*dd+4} offset0:{20*dd} offset1:{20*dd+20}')
a(f'''s_mov_b64 exec, -1
s_waitcnt lgkmcnt(0)
s_barrier
s_cmp_lg_u32 {WV}, 0
s_cbranch_scc1 L_end
v_mul_u32_u24 v15, 80, v1
v_add_u32 v15, {DP}, v15''')
gemv_reduce(20, 32, 15)
quad_gather(20, 21, 22, 23)
pack24(24, 20, 21, 22, 23)
a(f'''s_lshl_b32 {T0}, {JJ}, 11
s_lshl_b32 {T1}, {CB}, 8
s_add_u32 {T0}, {T0}, {T1}
s_add_u32 {T0}, {T0}, {APB}
v_lshlrev_b32 v15, 2, v1
s_mov_b32 exec_lo, 0x11111111
s_mov_b32 exec_hi, 0x11111111
buffer_store_dwordx4 v[24:27], v15, {WS}, {T0} offen sc1
s_mov_b64 exec, -1''')
stamp(9)
a('s_branch L_end')
a('L_comm:')
get_tag()
a(f'''s_lshl_b32 {T4}, {T2}, 11
s_add_u32 {T4}, {T4}, {QB}
v_lshlrev_b32 v5, 4, v1
v_lshlrev_b32 v6, 3, v1''')
poll([(8, 5, T4, 0), (12, 5, T4, 1024)], sleep=1)
stamp(3)
a(f'''ds_write_b64 v6, v[8:9] offset:{QL}
ds_write_b64 v6, v[12:13] offset:{QL+512}
s_waitcnt lgkmcnt(0)
s_barrier''')
a('L_end:')
end()
a('L_exit:\ns_endpgm')
a.raw(f'''.section .rodata,"a"
.p2align 6
.amdhsa_kernel {NAME}_kernel
  .amdhsa_next_free_vgpr 168
  .amdhsa_next_free_sgpr 102
  .amdhsa_accum_offset 168
  .amdhsa_group_segment_fixed_size 0
  .amdhsa_kernarg_size 112
  .amdhsa_user_sgpr_count 2
  .amdhsa_user_sgpr_kernarg_segment_ptr 1
  .amdhsa_system_sgpr_workgroup_id_x 1
  .amdhsa_float_denorm_mode_32 3
.end_amdhsa_kernel''')
open(OUT, 'w').write(a.text())
print('wrote', OUT, 'pads', a.npad)
```

```python
import sys
sys.path.insert(0, 'gen')
from asmlib import Asm
NAME = 'adaLN_cond__sliding_block_cached__geglu_ffn__decode'
PROF = '--prof' in sys.argv
SCALE_OUT = None
for x in sys.argv:
    if x.startswith('--scale='): SCALE_OUT = float(x.split('=')[1])
OUT = [x for x in sys.argv[1:] if not x.startswith('--')][0]

import struct
def f2u(f): return struct.unpack('<I', struct.pack('<f', f))[0]

MODB = 0x1000
QB   = 0x4000
MLB  = 0x8000
APB  = 0x10000
FPB  = 0x20000
OPB  = 0x40000
PRB  = 0x100000
WSN  = 0x200000

S_X, S_K, S_V, S_WQ, S_WO, S_BX, S_WG, S_WU, S_WD, S_C, S_WM, S_OUT, S_DBG, S_WS = [4 + 2*i for i in range(14)]
WS = 's[32:35]'; RA = 's[36:39]'; RB = 's[40:43]'; RC = 's[44:47]'
TAG = 's48'; WV = 's49'; PLO = 's50'; PHI = 's51'; T0 = 's52'; T1 = 's53'; CNT = 's54'; EP = 's55'
ID = 's56'; T2 = 's57'; T3 = 's58'; T4 = 's59'; MSK = 's60'; PK0 = 's61'; PK1 = 's62'; PK2 = 's63'; UP0 = 's64'; UP1 = 's65'
TP = 's[52:53]'
PS0 = 70
a = Asm()
nstamp = [0]
def stamp(i):
    if PROF: a(f's_memrealtime s[{PS0+2*i}:{PS0+2*i+1}]')
NST = 14
DBG = '--dbg' in sys.argv
def dbg_dump():
    a(f'''s_waitcnt lgkmcnt(0)
s_mov_b64 exec, 1
s_mov_b32 s36, s{S_DBG}
s_mov_b32 s37, s{S_DBG+1}
s_mov_b32 s38, 256
s_mov_b32 s39, 0x20000
v_mov_b32 v1, 0
s_not_b32 {T0}, s{PS0}
v_mov_b32 v2, {T0}
buffer_atomic_umax v2, v1, s[36:39], 0 offen
s_cmp_lg_u32 {WV}, 0
s_cbranch_scc1 L_dbg_done''')
    def put(slot, st):
        a(f'v_mov_b32 v2, s{PS0+2*st}\nbuffer_atomic_umax v2, v1, s[36:39], 0 offen offset:{4*slot}')
    put(1, 0)
    a('s_cmp_ge_u32 s2, 32\ns_cbranch_scc1 L_dbg1')
    put(2, 2); put(3, 3)
    a('s_branch L_dbg_done\nL_dbg1:\ns_cmp_ge_u32 s2, 64\ns_cbranch_scc1 L_dbg2')
    put(4, 3); put(5, 4); put(14, 7); put(15, 8)
    a('s_branch L_dbg_done\nL_dbg2:\ns_cmp_lt_u32 s2, 96\ns_cbranch_scc1 L_dbg_done\ns_cmp_ge_u32 s2, 224\ns_cbranch_scc1 L_dbg3')
    put(6, 3); put(7, 5); put(8, 7); put(9, 8); put(10, 9)
    a('s_branch L_dbg_done\nL_dbg3:')
    put(11, 5); put(12, 6); put(13, 8)
    a('L_dbg_done:')
def prof_dump():
    if DBG: return dbg_dump()
    if not PROF: return
    a(f'''s_waitcnt lgkmcnt(0)
s_mov_b64 exec, 1
s_lshl_b32 {T0}, s2, 10
s_lshl_b32 {T1}, {WV}, 6
s_add_u32 {T0}, {T0}, {T1}
s_add_u32 {T0}, {T0}, {PRB}
v_mov_b32 v1, {T0}''')
    for i in range(NST):
        a(f'v_mov_b32 v2, s{PS0+2*i}\nbuffer_store_dword v2, v1, {WS}, 0 offen offset:{4*i}')
def end():
    prof_dump(); a('s_endpgm')

def srd(r, base, nbytes):
    n = int(r[2:].split(':')[0])
    a(f'''s_mov_b32 s{n}, s{base}
s_mov_b32 s{n+1}, s{base+1}
s_mov_b32 s{n+2}, {nbytes}
s_mov_b32 s{n+3}, 0x20000''')
def vr(b, n): return f'v[{b}:{b+n-1}]'

def load_tile(L, voff, r, stride, nl=8, flags='nt'):
    for j in range(nl):
        o = j * stride
        if o < 4096:
            a(f'buffer_load_dwordx4 {vr(L+4*j,4)}, v{voff}, {r}, 0 offen offset:{o} {flags}')
        else:
            a(f's_mov_b32 {T0}, {o}\nbuffer_load_dwordx4 {vr(L+4*j,4)}, v{voff}, {r}, {T0} offen {flags}')
def perm_tile(F, L, nl=8):
    np_ = nl // 2
    for c in range(4):
        for p in range(np_):
            a(f'v_perm_b32 v{F+(2*c)*np_+p}, v{L+4*(2*p+1)+c}, v{L+4*(2*p)+c}, {PLO}')
            a(f'v_perm_b32 v{F+(2*c+1)*np_+p}, v{L+4*(2*p+1)+c}, v{L+4*(2*p)+c}, {PHI}')
lab = [0]
def newlab(p):
    lab[0] += 1; return f'L_{p}_{lab[0]}'
def poll(loads, sleep=0):
    L = newlab('poll'); D = newlab('pdone')
    a(f'{L}:')
    for d, vo, so, im in loads:
        a(f'buffer_load_dwordx4 {vr(d,4)}, v{vo}, {WS}, {so} offen offset:{im} sc1')
    a('s_waitcnt vmcnt(0)')
    for i, (d, vo, so, im) in enumerate(loads):
        if i == 0: a(f'v_cmp_ne_u32 vcc, {TAG}, v{d+3}')
        else: a(f'v_cmp_ne_u32 {TP}, {TAG}, v{d+3}\ns_or_b64 vcc, vcc, {TP}')
    a(f's_cbranch_vccz {D}')
    if sleep: a(f's_sleep {sleep}')
    a(f's_sub_u32 {CNT}, {CNT}, 1\ns_cbranch_scc0 {L}')
    a(f'{D}:')
def rnd1(d, s):
    a(f'v_cvt_pk_bf16_f32 v{d}, v{s}, v{s}\nv_and_b32 v{d}, {MSK}, v{d}')
def rnd_pairs(regs, tmp):
    for i in range(0, len(regs), 2):
        x, y = regs[i], regs[i+1]
        a(f'v_cvt_pk_bf16_f32 v{tmp}, v{x}, v{y}\nv_lshlrev_b32 v{x}, 16, v{tmp}\nv_and_b32 v{y}, {MSK}, v{tmp}')
def unpack(dst, src, n):
    for i in range(n):
        a(f'v_lshlrev_b32 v{dst+2*i}, 16, v{src+i}\nv_and_b32 v{dst+2*i+1}, {MSK}, v{src+i}')
DPPM = 'row_mask:0xf bank_mask:0xf'
def wave_reduce(op, t, u):
    for c in ('quad_perm:[1,0,3,2]', 'quad_perm:[2,3,0,1]', 'row_half_mirror', 'row_mirror'):
        a(f'{op}_dpp v{t}, v{t}, v{t} {c} {DPPM}')
    a(f'v_mov_b32 v{u}, v{t}\nv_permlane16_swap_b32 v{t}, v{u}\n{op} v{t}, v{t}, v{u}')
    a(f'v_mov_b32 v{u}, v{t}\nv_permlane32_swap_b32 v{t}, v{u}\n{op} v{t}, v{t}, v{u}')
def pack24(G, x0, x1, x2, x3):
    a(f'''v_perm_b32 v{G}, v{x0}, v{x3}, {PK0}
v_perm_b32 v{G+1}, v{x1}, v{x3}, {PK1}
v_perm_b32 v{G+2}, v{x2}, v{x3}, {PK2}
v_mov_b32 v{G+3}, {TAG}''')
def unpack24(G):
    a(f'''v_perm_b32 v{G+3}, v{G+1}, v{G}, {UP0}
v_perm_b32 v{G+3}, v{G+2}, v{G+3}, {UP1}''')
LOG2E = f2u(1.4426950408889634)

def layernorm8(X, T, tmp, tmp2, tmp3):
    a(f'v_add_f32 v{tmp}, v{X}, v{X+1}')
    for i in range(2, 8): a(f'v_add_f32 v{tmp}, v{tmp}, v{X+i}')
    wave_reduce('v_add_f32', tmp, tmp2)
    a(f'v_mul_f32 v{tmp}, {hex(f2u(1/512))}, v{tmp}')
    for i in range(8): a(f'v_sub_f32 v{T+i}, v{X+i}, v{tmp}')
    a(f'v_mul_f32 v{tmp3}, v{T}, v{T}')
    for i in range(1, 8): a(f'v_fmac_f32 v{tmp3}, v{T+i}, v{T+i}')
    wave_reduce('v_add_f32', tmp3, tmp2)
    a(f'v_mul_f32 v{tmp3}, {hex(f2u(1/512))}, v{tmp3}')
    ln_scalars(tmp, tmp3, tmp2)
    for i in range(8): a(f'v_sub_f32 v{X+i}, v{X+i}, v{tmp}')
    rnd_pairs(list(range(X, X+8)), T)
    for i in range(8): div_nr(X+i, tmp3, tmp2, T)
    rnd_pairs(list(range(X, X+8)), T)
def ln_scalars(mean, var, rcp):
    rnd1(mean, mean); rnd1(var, var)
    a(f'v_add_f32 v{var}, {hex(f2u(1e-5))}, v{var}')
    rnd1(var, var)
    a(f'v_sqrt_f32 v{var}, v{var}')
    rnd1(var, var)
    a(f'v_rcp_f32 v{rcp}, v{var}')
def div_nr(x, den, rcp, t):
    a(f'''v_mul_f32 v{t}, v{x}, v{rcp}
v_fma_f32 v{x}, -v{t}, v{den}, v{x}
v_fma_f32 v{x}, v{x}, v{rcp}, v{t}''')

def gemv_core(AF, F, ACC):
    for dd in range(8):
        a(f'v_mfma_f32_16x16x32_bf16 {vr(ACC+4*dd,4)}, {vr(AF,4)}, {vr(F+4*dd,4)}, 0')
def gemv_write_r4(ACC, vaddr):
    a('s_mov_b32 exec_lo, 0x00F0000F\ns_mov_b32 exec_hi, 0xF0000F00')
    for dd in range(0, 8, 2):
        a(f'ds_write2_b32 v{vaddr}, v{ACC+4*dd}, v{ACC+4*dd+4} offset0:{20*dd} offset1:{20*dd+20}')
    a('s_mov_b64 exec, -1')
def gemv_reduce(dst, T, vaddr):
    for i in range(4): a(f'ds_read_b128 {vr(T+4*i,4)}, v{vaddr} offset:{16*i}')
    a('s_waitcnt lgkmcnt(0)')
    a(f'v_pk_add_f32 {vr(T,2)}, {vr(T,2)}, {vr(T+2,2)}\nv_pk_add_f32 {vr(T+4,2)}, {vr(T+4,2)}, {vr(T+6,2)}')
    a(f'v_pk_add_f32 {vr(T+8,2)}, {vr(T+8,2)}, {vr(T+10,2)}\nv_pk_add_f32 {vr(T+12,2)}, {vr(T+12,2)}, {vr(T+14,2)}')
    a(f'v_pk_add_f32 {vr(T,2)}, {vr(T,2)}, {vr(T+4,2)}\nv_pk_add_f32 {vr(T+8,2)}, {vr(T+8,2)}, {vr(T+12,2)}')
    a(f'v_pk_add_f32 {vr(T,2)}, {vr(T,2)}, {vr(T+8,2)}\nv_add_f32 v{dst}, v{T}, v{T+1}')
def quad_gather(x, y1, y2, y3):
    a(f'''v_mov_b32_dpp v{y1}, v{x} quad_perm:[1,1,1,1] {DPPM}
v_mov_b32_dpp v{y2}, v{x} quad_perm:[2,2,2,2] {DPPM}
v_mov_b32_dpp v{y3}, v{x} quad_perm:[3,3,3,3] {DPPM}''')

hdr = open('cdna_kernels/' + NAME + '.s.ref').read().split('; Override')[0]
LDS = 32768
a.raw(hdr.rstrip('\n'))
a.raw(f'; @launch grid=(256,1,1) block=(576,1,1) lds={LDS}')
a.raw(f'''.amdgcn_target "amdgcn-amd-amdhsa--gfx950"
.text
.globl {NAME}_kernel
.p2align 8
.type {NAME}_kernel,@function
{NAME}_kernel:''')
stamp(0)
a(f'''s_load_dwordx16 s[4:19], s[0:1], 0
s_load_dwordx8 s[20:27], s[0:1], 64
s_load_dwordx4 s[28:31], s[0:1], 96
s_cmp_ge_u32 s2, 256
s_cbranch_scc1 L_exit
v_lshrrev_b32 v4, 6, v0
v_and_b32 v1, 63, v0
v_readfirstlane_b32 {WV}, v4
v_and_b32 v2, 15, v0
v_lshrrev_b32 v3, 4, v1
s_mov_b32 {PLO}, 0x05040100
s_mov_b32 {PHI}, 0x07060302
s_mov_b32 {MSK}, 0xffff0000
s_mov_b32 {PK0}, 0x07060501
s_mov_b32 {PK1}, 0x07060502
s_mov_b32 {PK2}, 0x07060503
s_mov_b32 {UP0}, 0x0c04000c
s_mov_b32 {UP1}, 0x04020100
s_mov_b32 {CNT}, 300000
s_waitcnt lgkmcnt(0)
s_load_dword {EP}, s[{S_WS}:{S_WS+1}], 0''')
srd(WS, S_WS, WSN)
stamp(1)
a(f'''s_cmp_lt_u32 s2, 96
s_cbranch_scc1 L_notattn
s_cmp_lt_u32 s2, 224
s_cbranch_scc1 L_attn
L_notattn:
s_cmp_eq_u32 {WV}, 8
s_cbranch_scc1 L_exit
s_cmp_lt_u32 s2, 32
s_cbranch_scc1 L_roleA
s_cmp_lt_u32 s2, 96
s_cbranch_scc1 L_roleB
s_sub_u32 {ID}, s2, 224
s_branch L_ffn''')
def get_tag():
    a(f'''s_waitcnt lgkmcnt(0)
s_mul_i32 {TAG}, {EP}, 0x9E3779B1
s_add_u32 {TAG}, {TAG}, 0x7F4A7C15''')

PB = 0
def r4_geom(vrow, vnl, vP, vchunk_own, vchunk_all):
    a(f'''s_and_b32 {T2}, {WV}, 3
s_lshr_b32 {T3}, {WV}, 2
v_lshrrev_b32 v5, 2, v2
v_and_b32 v6, 3, v2
v_lshl_add_u32 v7, v5, 2, v3
s_lshl_b32 {T0}, {T2}, 4
v_add_u32 v{vchunk_own}, {T0}, v7
v_lshlrev_b32 v{vrow}, 3, v{vchunk_own}
v_lshlrev_b32 v{vnl}, 4, v6
v_add_u32 v8, {T2}, v6
v_and_b32 v8, 3, v8
v_lshl_add_u32 v{vchunk_all}, v8, 4, v7
s_mul_i32 {T0}, {T3}, {32*80}
s_lshl_b32 {T1}, {T2}, 4
s_add_u32 {T0}, {T0}, {T1}
v_mul_u32_u24 v{vP}, {8*80}, v6
v_lshl_add_u32 v{vP}, v5, 2, v{vP}
v_add_u32 v{vP}, {T0}, v{vP}''')

L_, F_, ACC_, AF_ = 32, 64, 96, 28
def mod_role(first):
    skip = newlab('modskip'); skip2 = newlab('modskip2')
    a(f's_cmp_ge_u32 {WV}, 4\ns_cbranch_scc1 {skip}')
    srd(RA, S_WM, 512*6144); srd(RB, S_C, 1024)
    r4_geom(10, 11, 12, 13, 14)
    a(f'''v_lshlrev_b32 v15, 4, v13
buffer_load_dwordx4 v[16:19], v15, {RB}, 0 offen
s_movk_i32 {T1}, 6144
v_mul_lo_u32 v15, v10, {T1}
s_lshl_b32 {T1}, {ID}, 6
v_add3_u32 v15, v15, v11, {T1}''')
    load_tile(L_, 15, RA, 6144)
    a('s_waitcnt vmcnt(8)')
    unpack(20, 16, 4)
    for i in range(8):
        a(f'v_mul_f32 v{F_+i}, {hex(LOG2E ^ 0x80000000)}, v{20+i}')
    for i in range(8): a(f'v_exp_f32 v{F_+i}, v{F_+i}')
    for i in range(8): a(f'v_add_f32 v{F_+i}, 1.0, v{F_+i}')
    for i in range(8): a(f'v_rcp_f32 v{F_+i}, v{F_+i}')
    for i in range(8): a(f'v_mul_f32 v{20+i}, v{20+i}, v{F_+i}')
    for i in range(4): a(f'v_cvt_pk_bf16_f32 v{AF_+i}, v{20+2*i}, v{21+2*i}')
    a('s_waitcnt vmcnt(0)')
    if first: stamp(2)
    perm_tile(F_, L_)
    gemv_core(AF_, F_, ACC_)
    gemv_write_r4(ACC_, 12)
    a(f'{skip}:')
    if first: get_tag()
    a('s_waitcnt lgkmcnt(0)\ns_barrier')
    a(f's_cmp_lg_u32 {WV}, 0\ns_cbranch_scc1 {skip2}')
    a(f'v_mul_u32_u24 v15, 80, v1')
    gemv_reduce(20, L_, 15)
    quad_gather(20, 21, 22, 23)
    a(f'''v_cvt_pk_bf16_f32 v24, v20, v21
v_cvt_pk_bf16_f32 v25, v22, v23
v_mov_b32 v26, {TAG}
v_mov_b32 v27, {TAG}
s_lshl_b32 {T0}, {ID}, 7
s_add_u32 {T0}, {T0}, {MODB}
v_lshlrev_b32 v15, 2, v1
s_mov_b32 exec_lo, 0x11111111
s_mov_b32 exec_hi, 0
buffer_store_dwordx4 v[24:27], v15, {WS}, {T0} offen sc1
s_mov_b64 exec, -1''')
    a(f'{skip2}:')

a('L_roleA:')
a(f's_mov_b32 {ID}, s2')
mod_role(True)
stamp(3)
a(f'''s_cmp_ge_u32 s2, 24
s_cbranch_scc1 L_end
s_add_u32 {ID}, s2, 32
s_barrier
s_branch L_ffn_notag''')

a('L_roleB:')
a(f's_sub_u32 {ID}, s2, 32')
srd(RA, S_WQ, 512*8192); srd(RB, S_X, 1024)
r4_geom(10, 11, 12, 13, 14)
a(f'''v_lshlrev_b32 v15, 4, v14
buffer_load_dwordx4 v[16:19], v15, {RB}, 0 offen
v_lshlrev_b32 v9, 13, v10
s_lshl_b32 {T1}, {ID}, 7
s_lshl_b32 {T0}, {T3}, 6
s_add_u32 {T1}, {T1}, {T0}
v_add3_u32 v9, v9, v11, {T1}''')
load_tile(L_, 9, RA, 8192)
a('s_waitcnt vmcnt(8)')
unpack(20, 16, 4)
layernorm8(20, F_, 5, 6, 7)
a('s_waitcnt vmcnt(0)')
stamp(2)
perm_tile(F_, L_)
get_tag()
a(f'v_lshlrev_b32 v15, 5, v14\ns_mov_b32 {T4}, {MODB}')
poll([(L_, 15, T4, 0), (L_+4, 15, T4, 16), (L_+8, 15, T4, 2048), (L_+12, 15, T4, 2064)])
stamp(3)
for i, src in enumerate([L_, L_+1, L_+4, L_+5]): unpack(L_+16+2*i, src, 1)
for i, src in enumerate([L_+8, L_+9, L_+12, L_+13]): unpack(ACC_+2*i, src, 1)
for i in range(8): a(f'v_add_f32 v{ACC_+i}, 1.0, v{ACC_+i}')
rnd_pairs(list(range(ACC_, ACC_+8)), 5)
for i in range(8): a(f'v_mul_f32 v{20+i}, v{20+i}, v{ACC_+i}')
rnd_pairs(list(range(20, 28)), 5)
for i in range(8): a(f'v_add_f32 v{20+i}, v{20+i}, v{L_+16+i}')
for i in range(4): a(f'v_cvt_pk_bf16_f32 v{AF_+i}, v{20+2*i}, v{21+2*i}')
gemv_core(AF_, F_, ACC_)
gemv_write_r4(ACC_, 12)
a('s_waitcnt lgkmcnt(0)\ns_barrier')
a(f's_cmp_lg_u32 {WV}, 0\ns_cbranch_scc1 L_B_skip')
a(f'v_mul_u32_u24 v15, 80, v1')
gemv_reduce(20, L_, 15)
quad_gather(20, 21, 22, 23)
a(f'''v_cvt_pk_bf16_f32 v24, v20, v21
v_cvt_pk_bf16_f32 v25, v22, v23
v_mov_b32 v26, {TAG}
v_mov_b32 v27, {TAG}
s_lshl_b32 {T0}, {ID}, 8
s_add_u32 {T0}, {T0}, {QB}
v_lshlrev_b32 v15, 2, v1
s_mov_b32 exec_lo, 0x11111111
s_mov_b32 exec_hi, 0x11111111
buffer_store_dwordx4 v[24:27], v15, {WS}, {T0} offen sc1
s_mov_b64 exec, -1
L_B_skip:''')
stamp(4)
a(f's_barrier\ns_add_u32 {ID}, {ID}, 32')
mod_role(False)
stamp(5)
a(f'''s_sub_u32 {ID}, {ID}, 32
s_cmp_lg_u32 {WV}, 0
s_cbranch_scc1 L_end
s_cmp_ge_u32 {ID}, 32
s_cbranch_scc1 L_end''')
srd(RA, S_X, 1024); srd(RB, S_OUT, 1024)
a(f'''v_and_b32 v5, 3, v1
v_lshrrev_b32 v6, 2, v1
s_lshl_b32 {T0}, {ID}, 2
v_add_u32 v5, {T0}, v5
v_lshlrev_b32 v7, 3, v5
buffer_load_dwordx2 v[10:11], v7, {RA}, 0 offen
v_lshlrev_b32 v8, 4, v5
v_lshl_add_u32 v9, v6, 11, v8
s_mov_b32 {T4}, {MODB + 256*16}
s_mov_b32 {T2}, {MODB + 640*16}
s_mov_b32 {T3}, {APB}''')
poll([(12, 8, T4, 0), (16, 8, T2, 0), (20, 9, T3, 0)], sleep=2)
stamp(6)
unpack24(20)
def red16(base):
    for c in ('row_ror:4', 'row_ror:8'):
        for i in range(4): a(f'v_add_f32_dpp v{base+i}, v{base+i}, v{base+i} {c} {DPPM}')
    for sw in ('v_permlane16_swap_b32', 'v_permlane32_swap_b32'):
        for i in range(4): a(f'v_mov_b32 v{40+i}, v{base+i}')
        for i in range(4): a(f'{sw} v{base+i}, v{40+i}')
        for i in range(4): a(f'v_add_f32 v{base+i}, v{base+i}, v{40+i}')
red16(20)
rnd_pairs([20, 21, 22, 23], 5)
unpack(24, 12, 2)
unpack(28, 16, 2)
unpack(32, 10, 2)
for i in range(4): a(f'v_mul_f32 v{20+i}, v{20+i}, v{24+i}')
rnd_pairs([20, 21, 22, 23], 5)
for i in range(4): a(f'v_add_f32 v{20+i}, v{20+i}, v{32+i}')
rnd_pairs([20, 21, 22, 23], 5)
a(f'''s_mov_b32 {T4}, {FPB}
s_mov_b32 {T2}, {FPB + 16*2048}
s_mov_b32 {T3}, {FPB + 32*2048}
s_mov_b32 {T1}, {FPB + 48*2048}
v_and_b32 v12, 7, v6
v_lshl_add_u32 v12, v12, 11, v8
v_mov_b32 v13, {T1}
v_add_u32 v12, v12, v13''')
poll([(48, 9, T4, 0), (52, 9, T2, 0), (56, 9, T3, 0), (60, 12, '0', 0)])
stamp(7)
for b in (48, 52, 56, 60): unpack24(b)
a('s_mov_b32 exec_lo, 0\ns_mov_b32 exec_hi, -1')
for i in range(4): a(f'v_mov_b32 v{60+i}, 0')
a('s_mov_b64 exec, -1')
for i in range(4): a(f'v_add_f32 v{48+i}, v{48+i}, v{52+i}\nv_add_f32 v{56+i}, v{56+i}, v{60+i}')
for i in range(4): a(f'v_add_f32 v{48+i}, v{48+i}, v{56+i}')
red16(48)
rnd_pairs([48, 49, 50, 51], 5)
for i in range(4): a(f'v_mul_f32 v{48+i}, v{48+i}, v{28+i}')
rnd_pairs([48, 49, 50, 51], 5)
for i in range(4): a(f'v_add_f32 v{48+i}, v{48+i}, v{20+i}')
if SCALE_OUT is not None:
    for i in range(4): a(f'v_mul_f32 v{48+i}, {hex(f2u(SCALE_OUT))}, v{48+i}')
a(f'''v_cvt_pk_bf16_f32 v52, v48, v49
v_cvt_pk_bf16_f32 v53, v50, v51
s_mov_b64 exec, 15
buffer_store_dwordx2 v[52:53], v7, {RB}, 0 offen
s_cmp_lg_u32 {ID}, 0
s_cbranch_scc1 L_red_done
s_mov_b64 exec, 1
s_add_u32 {T0}, {EP}, 1
v_mov_b32 v5, 0
v_mov_b32 v6, {T0}
buffer_store_dword v6, v5, {WS}, 0 offen sc1
L_red_done:
s_mov_b64 exec, -1''')
stamp(8)
a('s_branch L_end')

a('L_ffn:')
get_tag()
a('L_ffn_notag:')
r4_geom(10, 11, 12, 13, 14)
a(f'v_lshlrev_b32 v15, 8, v1\ns_mov_b32 {T4}, {QB}')
poll([(16, 15, T4, 0)], sleep=4)
stamp(4)
a(f'''s_cmp_lt_u32 {WV}, 4
s_cselect_b32 s36, s{S_WG}, s{S_WU}
s_cselect_b32 s37, s{S_WG+1}, s{S_WU+1}
s_mov_b32 s38, {512*3584}
s_mov_b32 s39, 0x20000
s_movk_i32 {T1}, 3584
v_mul_lo_u32 v15, v10, {T1}
s_lshl_b32 {T1}, {ID}, 6
v_add3_u32 v15, v15, v11, {T1}''')
load_tile(L_, 15, RA, 3584)
L2_, F2_ = 96, 128
srd(RB, S_WD, 1792*1024); srd(RC, S_X, 1024)
a(f'''s_cmp_ge_u32 {WV}, 4
s_cbranch_scc1 L_ffn_nodown
s_lshl_b32 {T1}, {ID}, 15
s_lshl_b32 {T0}, {WV}, 8
s_add_u32 {T1}, {T1}, {T0}
v_lshlrev_b32 v15, 13, v3
v_lshl_add_u32 v15, v2, 4, v15
v_add_u32 v15, {T1}, v15''')
load_tile(L2_, 15, RB, 1024)
a('L_ffn_nodown:')
a(f'''s_lshl_b32 {T0}, {WV}, 4
v_add_u32 v16, {T0}, v2
v_lshl_add_u32 v17, v16, 2, v3
v_lshlrev_b32 v18, 1, v17
buffer_load_ushort v19, v18, {RC}, 0 offen
v_lshlrev_b32 v20, 4, v16
s_mov_b32 {T4}, {MODB + 256*16}''')
poll([(128, 20, T4, 0), (132, 20, T4, 2048)], sleep=2)
a(f's_mov_b32 {T4}, {MODB + 512*16}')
poll([(136, 20, T4, 0)], sleep=2)
stamp(5)
a(f'''v_cmp_gt_u32 vcc, 2, v3
v_and_b32 v21, 1, v3
v_cmp_eq_u32 {TP}, 0, v21
v_cndmask_b32 v128, v129, v128, vcc
v_cndmask_b32 v132, v133, v132, vcc
v_cndmask_b32 v136, v137, v136, vcc''')
for b, d in ((128, 160), (132, 161), (136, 162)):
    a(f'v_lshlrev_b32 v{b+1}, 16, v{b}\nv_and_b32 v{b}, {MSK}, v{b}\nv_cndmask_b32 v{d}, v{b}, v{b+1}, {TP}')
a(f'v_lshlrev_b32 v19, 16, v19\nv_add_f32 v162, 1.0, v162')
rnd1(162, 162)
perm_tile(F_, L_)
a(f's_cmp_ge_u32 {WV}, 4\ns_cbranch_scc1 L_ffn_noperm2')
perm_tile(F2_, L2_)
a('L_ffn_noperm2:')
a(f'v_lshl_add_u32 v21, v3, 13, v20\ns_mov_b32 {T4}, {APB}\ns_mov_b32 {T2}, {APB+4096}')
ST = 8192
H2 = 8448
TT = 9472
a(f'''v_lshlrev_b32 v22, 4, v13
s_lshl_b32 {T0}, {WV}, 3
v_lshrrev_b32 v23, 1, v3
v_and_b32 v24, 1, v3
v_lshlrev_b32 v23, 6, v23
v_lshl_add_u32 v23, v24, 2, v23
v_add_u32 v23, {T0}, v23
v_lshrrev_b32 v24, 5, v1
v_lshlrev_b32 v24, 6, v24
v_lshl_add_u32 v24, v2, 2, v24''')
poll([(L_, 21, T4, 0), (L_+4, 21, T4, 2048), (L_+8, 21, T2, 0), (L_+12, 21, T2, 2048)])
stamp(6)
for i in range(4): unpack24(L_+4*i)
a(f'''v_pk_add_f32 {vr(L_,2)}, {vr(L_,2)}, {vr(L_+4,2)}
v_pk_add_f32 {vr(L_+2,2)}, {vr(L_+2,2)}, {vr(L_+6,2)}
v_pk_add_f32 {vr(L_+8,2)}, {vr(L_+8,2)}, {vr(L_+12,2)}
v_pk_add_f32 {vr(L_+10,2)}, {vr(L_+10,2)}, {vr(L_+14,2)}
v_pk_add_f32 {vr(L_,2)}, {vr(L_,2)}, {vr(L_+8,2)}
v_pk_add_f32 {vr(L_+2,2)}, {vr(L_+2,2)}, {vr(L_+10,2)}
v_permlane32_swap_b32 v{L_}, v{L_+2}
v_permlane32_swap_b32 v{L_+1}, v{L_+3}
v_add_f32 v{L_}, v{L_}, v{L_+2}
v_add_f32 v{L_+1}, v{L_+1}, v{L_+3}
v_permlane16_swap_b32 v{L_}, v{L_+1}
v_add_f32 v25, v{L_}, v{L_+1}''')
rnd1(25, 25)
a('v_mul_f32 v25, v25, v160'); rnd1(25, 25)
a('v_add_f32 v25, v25, v19'); rnd1(25, 25)
a(f'''v_mov_b32 v26, v25
v_mul_f32 v27, v25, v25
v_permlane32_swap_b32 v26, v27
v_add_f32 v26, v26, v27''')
for c in ('quad_perm:[1,0,3,2]', 'quad_perm:[2,3,0,1]', 'row_half_mirror', 'row_mirror'):
    a(f'v_add_f32_dpp v26, v26, v26 {c} {DPPM}')
a(f'''s_mov_b32 exec_lo, 0x00010001
s_mov_b32 exec_hi, 0x00010001
ds_write_b32 v23, v26 offset:{ST}
s_mov_b64 exec, -1
s_waitcnt lgkmcnt(0)
s_barrier
ds_read_b32 v26, v24 offset:{ST}
s_waitcnt lgkmcnt(0)''')
for c in ('quad_perm:[1,0,3,2]', 'quad_perm:[2,3,0,1]', 'row_half_mirror', 'row_mirror'):
    a(f'v_add_f32_dpp v26, v26, v26 {c} {DPPM}')
a(f'''v_mul_f32 v26, {hex(f2u(1/512))}, v26
v_mov_b32 v27, v26
v_permlane32_swap_b32 v26, v27
v_fma_f32 v27, -v26, v26, v27
v_max_f32 v27, 0, v27''')
ln_scalars(26, 27, 5)
a('v_sub_f32 v25, v25, v26'); rnd1(25, 25)
div_nr(25, 27, 5, 6); rnd1(25, 25)
a('v_mul_f32 v25, v25, v162'); rnd1(25, 25)
a(f'''v_add_f32 v25, v25, v161
v_cvt_pk_bf16_f32 v25, v25, v25
ds_write_b16 v18, v25 offset:{H2}
s_waitcnt lgkmcnt(0)
s_barrier
ds_read_b128 {vr(AF_,4)}, v22 offset:{H2}
s_waitcnt lgkmcnt(0)''')
stamp(7)
gemv_core(AF_, F_, ACC_)
gemv_write_r4(ACC_, 12)
a('s_waitcnt lgkmcnt(0)\ns_barrier')
a(f's_cmp_ge_u32 {WV}, 4\ns_cbranch_scc1 L_end')
a(f'v_mul_u32_u24 v15, 80, v1')
gemv_reduce(20, L_, 15)
rnd1(20, 20)
K1 = -2 * 0.7978845608028654 * 1.4426950408889634
a(f'''v_mov_b32 v21, v20
v_permlane32_swap_b32 v20, v21
v_mul_f32 v22, v20, v20
v_mov_b32 v23, {hex(f2u(K1))}
v_mov_b32 v24, {hex(f2u(K1*0.044715))}
v_fma_f32 v22, v22, v24, v23
v_mul_f32 v22, v22, v20
v_exp_f32 v22, v22
v_add_f32 v22, 1.0, v22
v_rcp_f32 v22, v22
v_mul_f32 v20, v20, v22''')
rnd1(20, 20)
a(f'''v_mul_f32 v20, v20, v21
v_cvt_pk_bf16_f32 v20, v20, v20
s_lshl_b32 {T0}, {WV}, 7
v_lshl_add_u32 v21, v1, 1, {T0}
v_lshl_add_u32 v22, v3, 4, {T0}
ds_write_b16 v21, v20 offset:{TT}
s_waitcnt lgkmcnt(0)
ds_read_b128 {vr(AF_,4)}, v22 offset:{TT}
s_waitcnt lgkmcnt(0)''')
gemv_core(AF_, F2_, ACC_)
a(f'''v_cmp_gt_u32 vcc, 16, v1
s_lshl_b32 {T0}, {ID}, 11
s_lshl_b32 {T1}, {WV}, 9
s_add_u32 {T0}, {T0}, {T1}
s_add_u32 {T0}, {T0}, {FPB}
v_lshlrev_b32 v15, 5, v2
v_lshl_add_u32 v15, v3, 4, v15''')
for i in range(4): a(f'v_cndmask_b32 v{20+i}, v{ACC_+16+4*i}, v{ACC_+4*i}, vcc')
pack24(24, 20, 21, 22, 23)
a(f'''s_mov_b32 exec_hi, 0
buffer_store_dwordx4 v[24:27], v15, {WS}, {T0} offen sc1
s_mov_b64 exec, -1''')
stamp(8)
a('s_branch L_end')

QL = 0; OL = 1024; OW = 2112; MLL = OL + 8*OW; DP = MLL + 256
a('L_attn:')
a(f'''s_sub_u32 {ID}, s2, 96
s_and_b32 {T2}, {ID}, 7
s_lshr_b32 {T3}, {ID}, 3
s_cmp_eq_u32 {WV}, 8
s_cbranch_scc1 L_comm''')
srd(RA, S_K, 0x8000000); srd(RB, S_V, 0x8000000)
KF, VL, VF, SC, PF, OA = 32, 64, 32, 16, 24, 96
a(f'''s_lshl_b32 {T0}, {T2}, 24
s_lshl_b32 {T1}, {T3}, 16
s_add_u32 {T0}, {T0}, {T1}
s_lshl_b32 {T1}, {WV}, 13
s_add_u32 {T0}, {T0}, {T1}
s_add_u32 {T4}, {T0}, {61440*256}
s_add_u32 {T1}, {T4}, 4096
v_and_b32 v5, 3, v2
v_lshrrev_b32 v6, 2, v2
v_lshl_add_u32 v5, v5, 2, v6
v_lshlrev_b32 v5, 8, v5
v_lshl_add_u32 v5, v3, 4, v5
v_lshlrev_b32 v6, 4, v1''')
for T in range(2):
    for kk in range(4):
        a(f'buffer_load_dwordx4 {vr(KF+16*T+4*kk,4)}, v5, {RA}, {T4 if T==0 else T1} offen offset:{64*kk} nt')
for j in range(8):
    a(f'buffer_load_dwordx4 {vr(VL+4*j,4)}, v6, {RB}, {T4 if j<4 else T1} offen offset:{1024*(j&3)} nt')
stamp(2)
a(f'''v_and_b32 v7, 3, v2
v_lshlrev_b32 v7, 8, v7
v_lshl_add_u32 v7, v3, 4, v7
s_mul_i32 {T0}, {WV}, {OW}
v_mul_u32_u24 v8, 528, v2
v_lshl_add_u32 v8, v3, 7, v8
v_add_u32 v8, {T0}, v8
s_lshl_b32 {T0}, {WV}, 3
v_lshl_add_u32 v9, v2, 6, {T0}''')
srd(RC, S_WO, 4096*1024)
JJ = 's66'; CB = 's67'; HG = 's68'
a(f'''s_and_b32 {T0}, {T3}, 1
s_lshl_b32 {JJ}, {T2}, 1
s_add_u32 {JJ}, {JJ}, {T0}
s_lshr_b32 {CB}, {ID}, 4
s_lshr_b32 {T0}, {WV}, 2
s_lshl_b32 {HG}, {JJ}, 1
s_add_u32 {HG}, {HG}, {T0}
v_lshrrev_b32 v10, 3, v2
v_lshl_add_u32 v10, v10, 2, v3
v_lshlrev_b32 v10, 10, v10
v_and_b32 v11, 7, v2
v_lshl_add_u32 v10, v11, 4, v10
s_lshl_b32 {T0}, {JJ}, 18
s_lshl_b32 {T1}, {WV}, 15
s_add_u32 {T0}, {T0}, {T1}
s_lshl_b32 {T1}, {CB}, 7
s_add_u32 {T0}, {T0}, {T1}
v_add_u32 v10, {T0}, v10''')
get_tag()
a('s_barrier')
stamp(3)
WL, WF = 132, 148
load_tile(WL, 10, RC, 8192, nl=4)
for kk in range(4): a(f'ds_read_b128 {vr(OA+4*kk,4)}, v7 offset:{QL+64*kk}')
a('s_waitcnt vmcnt(12) lgkmcnt(0)')
stamp(4)
for T in range(2):
    for kk in range(4):
        a(f'v_mfma_f32_16x16x32_bf16 {vr(SC+4*T,4)}, {vr(KF+16*T+4*kk,4)}, {vr(OA+4*kk,4)}, {"0" if kk==0 else vr(SC+4*T,4)}')
S8 = list(range(SC, SC+8))
rnd_pairs(S8, 5)
for r in S8: a(f'v_mul_f32 v{r}, {hex(f2u(128**-0.5))}, v{r}')
rnd_pairs(S8, 5)
a(f'''v_max3_f32 v12, v{SC}, v{SC+1}, v{SC+2}
v_max3_f32 v13, v{SC+3}, v{SC+4}, v{SC+5}
v_max3_f32 v12, v12, v{SC+6}, v{SC+7}
v_max_f32 v12, v12, v13
v_mov_b32 v13, v12
v_permlane16_swap_b32 v12, v13
v_max_f32 v12, v12, v13
v_mov_b32 v13, v12
v_permlane32_swap_b32 v12, v13
v_max_f32 v12, v12, v13''')
for r in S8: a(f'v_sub_f32 v{r}, v{r}, v12')
for r in S8: a(f'v_mul_f32 v{r}, {hex(LOG2E)}, v{r}')
for r in S8: a(f'v_exp_f32 v{r}, v{r}')
for i in range(4): a(f'v_cvt_pk_bf16_f32 v{PF+i}, v{SC+2*i}, v{SC+2*i+1}')
for i in range(4): a(f'v_mov_b32 v{28+i}, 0x3f803f80')
a('s_waitcnt vmcnt(4)')
stamp(5)
perm_tile(VF, VL)
for dd in range(8):
    a(f'v_mfma_f32_16x16x32_bf16 {vr(OA+4*dd,4)}, {vr(VF+4*dd,4)}, {vr(PF,4)}, 0')
a(f'v_mfma_f32_16x16x32_bf16 {vr(OA+32,4)}, v[28:31], {vr(PF,4)}, 0')
a('s_mov_b32 exec_lo, 0x000F000F\ns_mov_b32 exec_hi, 0x000F000F')
for dd in range(8):
    a(f'ds_write_b128 v8, {vr(OA+4*dd,4)} offset:{OL+16*dd}')
a(f'''s_mov_b64 exec, 15
ds_write2_b32 v9, v12, v{OA+32} offset0:{0} offset1:{1}''' .replace('v9,', 'v14,') if False else 's_mov_b64 exec, 15')
a(f'''v_add_u32 v14, {MLL}, v9
ds_write2_b32 v14, v12, v{OA+32} offset0:0 offset1:1
s_mov_b64 exec, -1
s_waitcnt lgkmcnt(0)
s_barrier''')
stamp(6)
a(f'''s_cmp_ge_u32 {WV}, 3
s_cbranch_scc1 L_attn_D
s_cmp_eq_u32 {WV}, 2
s_cbranch_scc1 L_attn_ml
v_lshrrev_b32 v12, 5, v1
s_lshl_b32 {T0}, {WV}, 1
v_add_u32 v12, {T0}, v12
v_and_b32 v13, 7, v1
v_lshlrev_b32 v14, 6, v12
v_lshl_add_u32 v14, v13, 3, v14
ds_read_b32 v15, v14 offset:{MLL}
v_mul_u32_u24 v16, 528, v12
v_and_b32 v17, 31, v1
v_lshl_add_u32 v16, v17, 4, v16''')
for w in range(8): a(f'ds_read_b128 {vr(KF+4*w,4)}, v16 offset:{OL+OW*w}')
a(f'''s_lshl_b32 {T0}, {T2}, 15
s_lshl_b32 {T1}, {T3}, 9
s_add_u32 {T0}, {T0}, {T1}
s_add_u32 {T0}, {T0}, {OPB}
v_lshlrev_b32 v18, 13, v12
v_lshl_add_u32 v18, v17, 4, v18
s_waitcnt lgkmcnt(8)
v_max_f32_dpp v19, v15, v15 row_ror:1 {DPPM}
v_max_f32_dpp v19, v19, v19 row_ror:2 {DPPM}
v_max_f32_dpp v19, v19, v19 row_ror:4 {DPPM}
v_sub_f32 v15, v15, v19
v_mul_f32 v15, {hex(LOG2E)}, v15
v_exp_f32 v15, v15
s_waitcnt lgkmcnt(0)''')
for i in range(4): a(f'v_mul_f32_dpp v{20+i}, v15, v{KF+i} row_newbcast:0 {DPPM}')
for w in range(1, 8):
    for i in range(4): a(f'v_fmac_f32_dpp v{20+i}, v15, v{KF+4*w+i} row_newbcast:{w} {DPPM}')
pack24(24, 20, 21, 22, 23)
a(f'''buffer_store_dwordx4 v[24:27], v18, {WS}, {T0} offen sc1
s_branch L_attn_D
L_attn_ml:
v_and_b32 v13, 7, v1
v_lshlrev_b32 v14, 6, v3
v_lshl_add_u32 v14, v13, 3, v14
ds_read_b64 v[16:17], v14 offset:{MLL}
s_lshl_b32 {T0}, {T2}, 10
s_lshl_b32 {T1}, {T3}, 4
s_add_u32 {T0}, {T0}, {T1}
s_add_u32 {T0}, {T0}, {MLB}
v_lshlrev_b32 v18, 8, v3
s_waitcnt lgkmcnt(0)
v_max_f32_dpp v24, v16, v16 row_ror:1 {DPPM}
v_max_f32_dpp v24, v24, v24 row_ror:2 {DPPM}
v_max_f32_dpp v24, v24, v24 row_ror:4 {DPPM}
v_sub_f32 v16, v16, v24
v_mul_f32 v16, {hex(LOG2E)}, v16
v_exp_f32 v16, v16
v_mul_f32 v25, v16, v17
v_add_f32_dpp v25, v25, v25 row_ror:1 {DPPM}
v_add_f32_dpp v25, v25, v25 row_ror:2 {DPPM}
v_add_f32_dpp v25, v25, v25 row_ror:4 {DPPM}
v_mov_b32 v26, {TAG}
v_mov_b32 v27, {TAG}
s_mov_b32 exec_lo, 0x00010001
s_mov_b32 exec_hi, 0x00010001
buffer_store_dwordx4 v[24:27], v18, {WS}, {T0} offen sc1
s_mov_b64 exec, -1
L_attn_D:''')
stamp(7)
a(f'''v_and_b32 v12, 3, v2
v_lshrrev_b32 v13, 3, v2
v_lshl_add_u32 v12, v13, 2, v12
v_bfe_u32 v13, v2, 2, 1
v_lshl_add_u32 v13, v13, 2, v3
v_lshlrev_b32 v14, 10, v12
v_lshl_add_u32 v14, v13, 4, v14
v_lshlrev_b32 v15, 5, v12
s_lshl_b32 {T0}, {HG}, 13
s_and_b32 {T1}, {WV}, 3
s_lshl_b32 {T1}, {T1}, 7
s_add_u32 {T4}, {T0}, {T1}
s_add_u32 {T4}, {T4}, {OPB}
s_lshl_b32 {T2}, {HG}, 8
s_add_u32 {T2}, {T2}, {MLB}
v_and_b32 v16, 7, v2
v_mul_u32_u24 v16, 640, v16
v_lshrrev_b32 v17, 3, v2
v_lshl_add_u32 v16, v17, 2, v16
s_lshl_b32 {T0}, {WV}, 3
s_add_u32 {T0}, {T0}, {DP}
v_add_u32 v16, {T0}, v16
s_waitcnt vmcnt(0)''')
perm_tile(WF, WL, nl=4)
poll([(32, 14, T4, 0), (36, 14, T4, 512), (40, 15, T2, 0), (44, 15, T2, 16)])
stamp(8)
unpack24(32); unpack24(36)
RED3 = ('quad_perm:[1,0,3,2]', 'quad_perm:[2,3,0,1]', 'row_ror:8')
a('v_max_f32 v18, v40, v44')
for c in RED3: a(f'v_max_f32_dpp v18, v18, v18 {c} {DPPM}')
a(f'''v_sub_f32 v40, v40, v18
v_sub_f32 v44, v44, v18
v_mul_f32 v40, {hex(LOG2E)}, v40
v_mul_f32 v44, {hex(LOG2E)}, v44
v_exp_f32 v40, v40
v_exp_f32 v44, v44
v_mul_f32 v48, v40, v41
v_fmac_f32 v48, v44, v45''')
for i in range(4): a(f'v_mul_f32 v{32+i}, v40, v{32+i}')
for i in range(4): a(f'v_fmac_f32 v{32+i}, v44, v{36+i}')
for c in RED3:
    for r in (48, 32, 33, 34, 35): a(f'v_add_f32_dpp v{r}, v{r}, v{r} {c} {DPPM}')
a('v_rcp_f32 v48, v48')
for i in range(4): a(f'v_mul_f32 v{32+i}, v48, v{32+i}')
a('v_cvt_pk_bf16_f32 v36, v32, v33\nv_cvt_pk_bf16_f32 v37, v34, v35')
for dd in range(8):
    a(f'v_mfma_f32_16x16x16_bf16 {vr(OA+4*dd,4)}, v[36:37], {vr(WF+2*dd,2)}, 0')
a('s_mov_b32 exec_lo, 0xFF0000FF\ns_mov_b32 exec_hi, 0')
for dd in range(0, 8, 2):
    a(f'ds_write2_b32 v16, v{OA+4*dd}, v{OA+4*dd+4} offset0:{20*dd} offset1:{20*dd+20}')
a(f'''s_mov_b64 exec, -1
s_waitcnt lgkmcnt(0)
s_barrier
s_cmp_lg_u32 {WV}, 0
s_cbranch_scc1 L_end
v_mul_u32_u24 v15, 80, v1
v_add_u32 v15, {DP}, v15''')
gemv_reduce(20, 32, 15)
quad_gather(20, 21, 22, 23)
pack24(24, 20, 21, 22, 23)
a(f'''s_lshl_b32 {T0}, {JJ}, 11
s_lshl_b32 {T1}, {CB}, 8
s_add_u32 {T0}, {T0}, {T1}
s_add_u32 {T0}, {T0}, {APB}
v_lshlrev_b32 v15, 2, v1
s_mov_b32 exec_lo, 0x11111111
s_mov_b32 exec_hi, 0x11111111
buffer_store_dwordx4 v[24:27], v15, {WS}, {T0} offen sc1
s_mov_b64 exec, -1''')
stamp(9)
a('s_branch L_end')
a('L_comm:')
get_tag()
a(f'''s_lshl_b32 {T4}, {T2}, 11
s_add_u32 {T4}, {T4}, {QB}
v_lshlrev_b32 v5, 4, v1
v_lshlrev_b32 v6, 3, v1''')
poll([(8, 5, T4, 0), (12, 5, T4, 1024)], sleep=1)
stamp(3)
a(f'''ds_write_b64 v6, v[8:9] offset:{QL}
ds_write_b64 v6, v[12:13] offset:{QL+512}
s_waitcnt lgkmcnt(0)
s_barrier''')
a('L_end:')
end()
a('L_exit:\ns_endpgm')
a.raw(f'''.section .rodata,"a"
.p2align 6
.amdhsa_kernel {NAME}_kernel
  .amdhsa_next_free_vgpr 168
  .amdhsa_next_free_sgpr 102
  .amdhsa_accum_offset 168
  .amdhsa_group_segment_fixed_size 0
  .amdhsa_kernarg_size 112
  .amdhsa_user_sgpr_count 2
  .amdhsa_user_sgpr_kernarg_segment_ptr 1
  .amdhsa_system_sgpr_workgroup_id_x 1
  .amdhsa_float_denorm_mode_32 3
.end_amdhsa_kernel''')
open(OUT, 'w').write(a.text())
print('wrote', OUT, 'pads', a.npad)
```

```python
import sys
sys.path.insert(0, 'gen')
from asmlib import Asm
NAME = 'adaLN_cond__sliding_block_cached__geglu_ffn__decode'
PROF = '--prof' in sys.argv
SCALE_OUT = None
for x in sys.argv:
    if x.startswith('--scale='): SCALE_OUT = float(x.split('=')[1])
OUT = [x for x in sys.argv[1:] if not x.startswith('--')][0]

import struct
def f2u(f): return struct.unpack('<I', struct.pack('<f', f))[0]

MODB = 0x1000
QB   = 0x4000
MLB  = 0x8000
APB  = 0x10000
FPB  = 0x20000
OPB  = 0x40000
PRB  = 0x100000
WSN  = 0x200000

S_X, S_K, S_V, S_WQ, S_WO, S_BX, S_WG, S_WU, S_WD, S_C, S_WM, S_OUT, S_DBG, S_WS = [4 + 2*i for i in range(14)]
WS = 's[32:35]'; RA = 's[36:39]'; RB = 's[40:43]'; RC = 's[44:47]'
TAG = 's48'; WV = 's49'; PLO = 's50'; PHI = 's51'; T0 = 's52'; T1 = 's53'; CNT = 's54'; EP = 's55'
ID = 's56'; T2 = 's57'; T3 = 's58'; T4 = 's59'; MSK = 's60'; PK0 = 's61'; PK1 = 's62'; PK2 = 's63'; UP0 = 's64'; UP1 = 's65'
TP = 's[52:53]'
PS0 = 70
a = Asm()
nstamp = [0]
def stamp(i):
    if PROF: a(f's_memrealtime s[{PS0+2*i}:{PS0+2*i+1}]')
NST = 14
DBG = '--dbg' in sys.argv
def dbg_dump():
    a(f'''s_waitcnt lgkmcnt(0)
s_mov_b64 exec, 1
s_mov_b32 s36, s{S_DBG}
s_mov_b32 s37, s{S_DBG+1}
s_mov_b32 s38, 256
s_mov_b32 s39, 0x20000
v_mov_b32 v1, 0
s_not_b32 {T0}, s{PS0}
v_mov_b32 v2, {T0}
buffer_atomic_umax v2, v1, s[36:39], 0 offen
s_cmp_lg_u32 {WV}, 0
s_cbranch_scc1 L_dbg_done''')
    def put(slot, st):
        a(f'v_mov_b32 v2, s{PS0+2*st}\nbuffer_atomic_umax v2, v1, s[36:39], 0 offen offset:{4*slot}')
    put(1, 0)
    a('s_cmp_ge_u32 s2, 32\ns_cbranch_scc1 L_dbg1')
    put(2, 2); put(3, 3)
    a('s_branch L_dbg_done\nL_dbg1:\ns_cmp_ge_u32 s2, 64\ns_cbranch_scc1 L_dbg2')
    put(4, 3); put(5, 4); put(14, 7); put(15, 8)
    a('s_branch L_dbg_done\nL_dbg2:\ns_cmp_lt_u32 s2, 96\ns_cbranch_scc1 L_dbg_done\ns_cmp_ge_u32 s2, 224\ns_cbranch_scc1 L_dbg3')
    put(6, 3); put(7, 5); put(8, 7); put(9, 8); put(10, 9)
    a('s_branch L_dbg_done\nL_dbg3:')
    put(11, 5); put(12, 6); put(13, 8)
    a('L_dbg_done:')
def prof_dump():
    if DBG: return dbg_dump()
    if not PROF: return
    a(f'''s_waitcnt lgkmcnt(0)
s_mov_b64 exec, 1
s_lshl_b32 {T0}, s2, 10
s_lshl_b32 {T1}, {WV}, 6
s_add_u32 {T0}, {T0}, {T1}
s_add_u32 {T0}, {T0}, {PRB}
v_mov_b32 v1, {T0}''')
    for i in range(NST):
        a(f'v_mov_b32 v2, s{PS0+2*i}\nbuffer_store_dword v2, v1, {WS}, 0 offen offset:{4*i}')
def end():
    prof_dump(); a('s_endpgm')

def srd(r, base, nbytes):
    n = int(r[2:].split(':')[0])
    a(f'''s_mov_b32 s{n}, s{base}
s_mov_b32 s{n+1}, s{base+1}
s_mov_b32 s{n+2}, {nbytes}
s_mov_b32 s{n+3}, 0x20000''')
def vr(b, n): return f'v[{b}:{b+n-1}]'

def load_tile(L, voff, r, stride, nl=8, flags='nt'):
    for j in range(nl):
        o = j * stride
        if o < 4096:
            a(f'buffer_load_dwordx4 {vr(L+4*j,4)}, v{voff}, {r}, 0 offen offset:{o} {flags}')
        else:
            a(f's_mov_b32 {T0}, {o}\nbuffer_load_dwordx4 {vr(L+4*j,4)}, v{voff}, {r}, {T0} offen {flags}')
def perm_tile(F, L, nl=8):
    np_ = nl // 2
    for c in range(4):
        for p in range(np_):
            a(f'v_perm_b32 v{F+(2*c)*np_+p}, v{L+4*(2*p+1)+c}, v{L+4*(2*p)+c}, {PLO}')
            a(f'v_perm_b32 v{F+(2*c+1)*np_+p}, v{L+4*(2*p+1)+c}, v{L+4*(2*p)+c}, {PHI}')
lab = [0]
def newlab(p):
    lab[0] += 1; return f'L_{p}_{lab[0]}'
def poll(loads, sleep=0):
    L = newlab('poll'); D = newlab('pdone')
    a(f'{L}:')
    for d, vo, so, im in loads:
        a(f'buffer_load_dwordx4 {vr(d,4)}, v{vo}, {WS}, {so} offen offset:{im} sc1')
    a('s_waitcnt vmcnt(0)')
    for i, (d, vo, so, im) in enumerate(loads):
        if i == 0: a(f'v_cmp_ne_u32 vcc, {TAG}, v{d+3}')
        else: a(f'v_cmp_ne_u32 {TP}, {TAG}, v{d+3}\ns_or_b64 vcc, vcc, {TP}')
    a(f's_cbranch_vccz {D}')
    if sleep: a(f's_sleep {sleep}')
    a(f's_sub_u32 {CNT}, {CNT}, 1\ns_cbranch_scc0 {L}')
    a(f'{D}:')
def rnd1(d, s):
    a(f'v_cvt_pk_bf16_f32 v{d}, v{s}, v{s}\nv_and_b32 v{d}, {MSK}, v{d}')
def rnd_pairs(regs, tmp):
    for i in range(0, len(regs), 2):
        x, y = regs[i], regs[i+1]
        a(f'v_cvt_pk_bf16_f32 v{tmp}, v{x}, v{y}\nv_lshlrev_b32 v{x}, 16, v{tmp}\nv_and_b32 v{y}, {MSK}, v{tmp}')
def unpack(dst, src, n):
    for i in range(n):
        a(f'v_lshlrev_b32 v{dst+2*i}, 16, v{src+i}\nv_and_b32 v{dst+2*i+1}, {MSK}, v{src+i}')
DPPM = 'row_mask:0xf bank_mask:0xf'
def wave_reduce(op, t, u):
    for c in ('quad_perm:[1,0,3,2]', 'quad_perm:[2,3,0,1]', 'row_half_mirror', 'row_mirror'):
        a(f'{op}_dpp v{t}, v{t}, v{t} {c} {DPPM}')
    a(f'v_mov_b32 v{u}, v{t}\nv_permlane16_swap_b32 v{t}, v{u}\n{op} v{t}, v{t}, v{u}')
    a(f'v_mov_b32 v{u}, v{t}\nv_permlane32_swap_b32 v{t}, v{u}\n{op} v{t}, v{t}, v{u}')
def pack24(G, x0, x1, x2, x3):
    a(f'''v_perm_b32 v{G}, v{x0}, v{x3}, {PK0}
v_perm_b32 v{G+1}, v{x1}, v{x3}, {PK1}
v_perm_b32 v{G+2}, v{x2}, v{x3}, {PK2}
v_mov_b32 v{G+3}, {TAG}''')
def unpack24(G):
    a(f'''v_perm_b32 v{G+3}, v{G+1}, v{G}, {UP0}
v_perm_b32 v{G+3}, v{G+2}, v{G+3}, {UP1}''')
LOG2E = f2u(1.4426950408889634)

def layernorm8(X, T, tmp, tmp2, tmp3):
    a(f'v_add_f32 v{tmp}, v{X}, v{X+1}')
    for i in range(2, 8): a(f'v_add_f32 v{tmp}, v{tmp}, v{X+i}')
    wave_reduce('v_add_f32', tmp, tmp2)
    a(f'v_mul_f32 v{tmp}, {hex(f2u(1/512))}, v{tmp}')
    for i in range(8): a(f'v_sub_f32 v{T+i}, v{X+i}, v{tmp}')
    a(f'v_mul_f32 v{tmp3}, v{T}, v{T}')
    for i in range(1, 8): a(f'v_fmac_f32 v{tmp3}, v{T+i}, v{T+i}')
    wave_reduce('v_add_f32', tmp3, tmp2)
    a(f'v_mul_f32 v{tmp3}, {hex(f2u(1/512))}, v{tmp3}')
    ln_scalars(tmp, tmp3, tmp2)
    for i in range(8): a(f'v_sub_f32 v{X+i}, v{X+i}, v{tmp}')
    rnd_pairs(list(range(X, X+8)), T)
    for i in range(8): div_nr(X+i, tmp3, tmp2, T)
    rnd_pairs(list(range(X, X+8)), T)
def ln_scalars(mean, var, rcp):
    rnd1(mean, mean); rnd1(var, var)
    a(f'v_add_f32 v{var}, {hex(f2u(1e-5))}, v{var}')
    rnd1(var, var)
    a(f'v_sqrt_f32 v{var}, v{var}')
    rnd1(var, var)
    a(f'v_rcp_f32 v{rcp}, v{var}')
def div_nr(x, den, rcp, t):
    a(f'''v_mul_f32 v{t}, v{x}, v{rcp}
v_fma_f32 v{x}, -v{t}, v{den}, v{x}
v_fma_f32 v{x}, v{x}, v{rcp}, v{t}''')

def gemv_core(AF, F, ACC):
    for dd in range(8):
        a(f'v_mfma_f32_16x16x32_bf16 {vr(ACC+4*dd,4)}, {vr(AF,4)}, {vr(F+4*dd,4)}, 0')
def gemv_write_r4(ACC, vaddr):
    a('s_mov_b32 exec_lo, 0x00F0000F\ns_mov_b32 exec_hi, 0xF0000F00')
    for dd in range(0, 8, 2):
        a(f'ds_write2_b32 v{vaddr}, v{ACC+4*dd}, v{ACC+4*dd+4} offset0:{20*dd} offset1:{20*dd+20}')
    a('s_mov_b64 exec, -1')
def gemv_reduce(dst, T, vaddr):
    for i in range(4): a(f'ds_read_b128 {vr(T+4*i,4)}, v{vaddr} offset:{16*i}')
    a('s_waitcnt lgkmcnt(0)')
    a(f'v_pk_add_f32 {vr(T,2)}, {vr(T,2)}, {vr(T+2,2)}\nv_pk_add_f32 {vr(T+4,2)}, {vr(T+4,2)}, {vr(T+6,2)}')
    a(f'v_pk_add_f32 {vr(T+8,2)}, {vr(T+8,2)}, {vr(T+10,2)}\nv_pk_add_f32 {vr(T+12,2)}, {vr(T+12,2)}, {vr(T+14,2)}')
    a(f'v_pk_add_f32 {vr(T,2)}, {vr(T,2)}, {vr(T+4,2)}\nv_pk_add_f32 {vr(T+8,2)}, {vr(T+8,2)}, {vr(T+12,2)}')
    a(f'v_pk_add_f32 {vr(T,2)}, {vr(T,2)}, {vr(T+8,2)}\nv_add_f32 v{dst}, v{T}, v{T+1}')
def quad_gather(x, y1, y2, y3):
    a(f'''v_mov_b32_dpp v{y1}, v{x} quad_perm:[1,1,1,1] {DPPM}
v_mov_b32_dpp v{y2}, v{x} quad_perm:[2,2,2,2] {DPPM}
v_mov_b32_dpp v{y3}, v{x} quad_perm:[3,3,3,3] {DPPM}''')

hdr = open('cdna_kernels/' + NAME + '.s.ref').read().split('; Override')[0]
LDS = 32768
a.raw(hdr.rstrip('\n'))
a.raw(f'; @launch grid=(256,1,1) block=(576,1,1) lds={LDS}')
a.raw(f'''.amdgcn_target "amdgcn-amd-amdhsa--gfx950"
.text
.globl {NAME}_kernel
.p2align 8
.type {NAME}_kernel,@function
{NAME}_kernel:''')
stamp(0)
a(f'''s_load_dwordx16 s[4:19], s[0:1], 0
s_load_dwordx8 s[20:27], s[0:1], 64
s_load_dwordx4 s[28:31], s[0:1], 96
s_cmp_ge_u32 s2, 256
s_cbranch_scc1 L_exit
v_lshrrev_b32 v4, 6, v0
v_and_b32 v1, 63, v0
v_readfirstlane_b32 {WV}, v4
v_and_b32 v2, 15, v0
v_lshrrev_b32 v3, 4, v1
s_mov_b32 {PLO}, 0x05040100
s_mov_b32 {PHI}, 0x07060302
s_mov_b32 {MSK}, 0xffff0000
s_mov_b32 {PK0}, 0x07060501
s_mov_b32 {PK1}, 0x07060502
s_mov_b32 {PK2}, 0x07060503
s_mov_b32 {UP0}, 0x0c04000c
s_mov_b32 {UP1}, 0x04020100
s_mov_b32 {CNT}, 300000
s_waitcnt lgkmcnt(0)
s_load_dword {EP}, s[{S_WS}:{S_WS+1}], 0''')
srd(WS, S_WS, WSN)
stamp(1)
TOUCH = '--touch' in sys.argv
if TOUCH:
    a(f's_cmp_lg_u32 {WV}, 8\ns_cbranch_scc1 L_notouch\nv_lshlrev_b32 v5, 18, v1\ns_mov_b64 exec, 0xffff')
    for i, (b, n) in enumerate([(S_WO, 4096*1024), (S_WG, 512*3584), (S_WU, 512*3584), (S_WD, 1792*1024), (S_WM, 512*6144), (S_OUT, 1024), (S_X, 1024), (S_C, 1024), (S_WQ, 4096*1024)]):
        srd(RA, b, n)
        a(f'buffer_load_dword v{10+i}, v5, {RA}, 0 offen')
    a(f'v_lshlrev_b32 v5, 16, v1\nbuffer_load_dword v20, v5, {WS}, 0 offen offset:256\ns_mov_b64 exec, -1\ns_waitcnt vmcnt(0)\nL_notouch:')
a(f'''s_cmp_lt_u32 s2, 96
s_cbranch_scc1 L_notattn
s_cmp_lt_u32 s2, 224
s_cbranch_scc1 L_attn
L_notattn:
s_cmp_eq_u32 {WV}, 8
s_cbranch_scc1 L_exit
s_cmp_lt_u32 s2, 32
s_cbranch_scc1 L_roleA
s_cmp_lt_u32 s2, 96
s_cbranch_scc1 L_roleB
s_sub_u32 {ID}, s2, 224
s_branch L_ffn''')
def get_tag():
    a(f'''s_waitcnt lgkmcnt(0)
s_mul_i32 {TAG}, {EP}, 0x9E3779B1
s_add_u32 {TAG}, {TAG}, 0x7F4A7C15''')

PB = 0
def r4_geom(vrow, vnl, vP, vchunk_own, vchunk_all):
    a(f'''s_and_b32 {T2}, {WV}, 3
s_lshr_b32 {T3}, {WV}, 2
v_lshrrev_b32 v5, 2, v2
v_and_b32 v6, 3, v2
v_lshl_add_u32 v7, v5, 2, v3
s_lshl_b32 {T0}, {T2}, 4
v_add_u32 v{vchunk_own}, {T0}, v7
v_lshlrev_b32 v{vrow}, 3, v{vchunk_own}
v_lshlrev_b32 v{vnl}, 4, v6
v_add_u32 v8, {T2}, v6
v_and_b32 v8, 3, v8
v_lshl_add_u32 v{vchunk_all}, v8, 4, v7
s_mul_i32 {T0}, {T3}, {32*80}
s_lshl_b32 {T1}, {T2}, 4
s_add_u32 {T0}, {T0}, {T1}
v_mul_u32_u24 v{vP}, {8*80}, v6
v_lshl_add_u32 v{vP}, v5, 2, v{vP}
v_add_u32 v{vP}, {T0}, v{vP}''')

L_, F_, ACC_, AF_ = 32, 64, 96, 28
def mod_role(first):
    skip = newlab('modskip'); skip2 = newlab('modskip2')
    a(f's_cmp_ge_u32 {WV}, 4\ns_cbranch_scc1 {skip}')
    srd(RA, S_WM, 512*6144); srd(RB, S_C, 1024)
    r4_geom(10, 11, 12, 13, 14)
    a(f'''v_lshlrev_b32 v15, 4, v13
buffer_load_dwordx4 v[16:19], v15, {RB}, 0 offen
s_movk_i32 {T1}, 6144
v_mul_lo_u32 v15, v10, {T1}
s_lshl_b32 {T1}, {ID}, 6
v_add3_u32 v15, v15, v11, {T1}''')
    load_tile(L_, 15, RA, 6144)
    a('s_waitcnt vmcnt(8)')
    unpack(20, 16, 4)
    for i in range(8):
        a(f'v_mul_f32 v{F_+i}, {hex(LOG2E ^ 0x80000000)}, v{20+i}')
    for i in range(8): a(f'v_exp_f32 v{F_+i}, v{F_+i}')
    for i in range(8): a(f'v_add_f32 v{F_+i}, 1.0, v{F_+i}')
    for i in range(8): a(f'v_rcp_f32 v{F_+i}, v{F_+i}')
    for i in range(8): a(f'v_mul_f32 v{20+i}, v{20+i}, v{F_+i}')
    for i in range(4): a(f'v_cvt_pk_bf16_f32 v{AF_+i}, v{20+2*i}, v{21+2*i}')
    a('s_waitcnt vmcnt(0)')
    if first: stamp(2)
    perm_tile(F_, L_)
    gemv_core(AF_, F_, ACC_)
    gemv_write_r4(ACC_, 12)
    a(f'{skip}:')
    if first: get_tag()
    a('s_waitcnt lgkmcnt(0)\ns_barrier')
    a(f's_cmp_lg_u32 {WV}, 0\ns_cbranch_scc1 {skip2}')
    a(f'v_mul_u32_u24 v15, 80, v1')
    gemv_reduce(20, L_, 15)
    quad_gather(20, 21, 22, 23)
    a(f'''v_cvt_pk_bf16_f32 v24, v20, v21
v_cvt_pk_bf16_f32 v25, v22, v23
v_mov_b32 v26, {TAG}
v_mov_b32 v27, {TAG}
s_lshl_b32 {T0}, {ID}, 7
s_add_u32 {T0}, {T0}, {MODB}
v_lshlrev_b32 v15, 2, v1
s_mov_b32 exec_lo, 0x11111111
s_mov_b32 exec_hi, 0
buffer_store_dwordx4 v[24:27], v15, {WS}, {T0} offen sc1
s_mov_b64 exec, -1''')
    a(f'{skip2}:')

a('L_roleA:')
a(f's_mov_b32 {ID}, s2')
mod_role(True)
stamp(3)
a(f'''s_cmp_ge_u32 s2, 24
s_cbranch_scc1 L_end
s_add_u32 {ID}, s2, 32
s_barrier
s_branch L_ffn_notag''')

a('L_roleB:')
a(f's_sub_u32 {ID}, s2, 32')
srd(RA, S_WQ, 512*8192); srd(RB, S_X, 1024)
r4_geom(10, 11, 12, 13, 14)
a(f'''v_lshlrev_b32 v15, 4, v14
buffer_load_dwordx4 v[16:19], v15, {RB}, 0 offen
v_lshlrev_b32 v9, 13, v10
s_lshl_b32 {T1}, {ID}, 7
s_lshl_b32 {T0}, {T3}, 6
s_add_u32 {T1}, {T1}, {T0}
v_add3_u32 v9, v9, v11, {T1}''')
load_tile(L_, 9, RA, 8192)
a('s_waitcnt vmcnt(8)')
unpack(20, 16, 4)
layernorm8(20, F_, 5, 6, 7)
a('s_waitcnt vmcnt(0)')
stamp(2)
perm_tile(F_, L_)
get_tag()
a(f'v_lshlrev_b32 v15, 5, v14\ns_mov_b32 {T4}, {MODB}')
poll([(L_, 15, T4, 0), (L_+4, 15, T4, 16), (L_+8, 15, T4, 2048), (L_+12, 15, T4, 2064)])
stamp(3)
for i, src in enumerate([L_, L_+1, L_+4, L_+5]): unpack(L_+16+2*i, src, 1)
for i, src in enumerate([L_+8, L_+9, L_+12, L_+13]): unpack(ACC_+2*i, src, 1)
for i in range(8): a(f'v_add_f32 v{ACC_+i}, 1.0, v{ACC_+i}')
rnd_pairs(list(range(ACC_, ACC_+8)), 5)
for i in range(8): a(f'v_mul_f32 v{20+i}, v{20+i}, v{ACC_+i}')
rnd_pairs(list(range(20, 28)), 5)
for i in range(8): a(f'v_add_f32 v{20+i}, v{20+i}, v{L_+16+i}')
for i in range(4): a(f'v_cvt_pk_bf16_f32 v{AF_+i}, v{20+2*i}, v{21+2*i}')
gemv_core(AF_, F_, ACC_)
gemv_write_r4(ACC_, 12)
a('s_waitcnt lgkmcnt(0)\ns_barrier')
a(f's_cmp_lg_u32 {WV}, 0\ns_cbranch_scc1 L_B_skip')
a(f'v_mul_u32_u24 v15, 80, v1')
gemv_reduce(20, L_, 15)
quad_gather(20, 21, 22, 23)
a(f'''v_cvt_pk_bf16_f32 v24, v20, v21
v_cvt_pk_bf16_f32 v25, v22, v23
v_mov_b32 v26, {TAG}
v_mov_b32 v27, {TAG}
s_lshl_b32 {T0}, {ID}, 8
s_add_u32 {T0}, {T0}, {QB}
v_lshlrev_b32 v15, 2, v1
s_mov_b32 exec_lo, 0x11111111
s_mov_b32 exec_hi, 0x11111111
buffer_store_dwordx4 v[24:27], v15, {WS}, {T0} offen sc1
s_mov_b64 exec, -1
L_B_skip:''')
stamp(4)
a(f's_barrier\ns_add_u32 {ID}, {ID}, 32')
mod_role(False)
stamp(5)
a(f'''s_sub_u32 {ID}, {ID}, 32
s_cmp_lg_u32 {WV}, 0
s_cbranch_scc1 L_end
s_cmp_ge_u32 {ID}, 32
s_cbranch_scc1 L_end''')
srd(RA, S_X, 1024); srd(RB, S_OUT, 1024)
a(f'''v_and_b32 v5, 3, v1
v_lshrrev_b32 v6, 2, v1
s_lshl_b32 {T0}, {ID}, 2
v_add_u32 v5, {T0}, v5
v_lshlrev_b32 v7, 3, v5
buffer_load_dwordx2 v[10:11], v7, {RA}, 0 offen
v_lshlrev_b32 v8, 4, v5
v_lshl_add_u32 v9, v6, 11, v8
s_mov_b32 {T4}, {MODB + 256*16}
s_mov_b32 {T2}, {MODB + 640*16}
s_mov_b32 {T3}, {APB}''')
poll([(12, 8, T4, 0), (16, 8, T2, 0), (20, 9, T3, 0)], sleep=2)
stamp(6)
unpack24(20)
def red16(base):
    for c in ('row_ror:4', 'row_ror:8'):
        for i in range(4): a(f'v_add_f32_dpp v{base+i}, v{base+i}, v{base+i} {c} {DPPM}')
    for sw in ('v_permlane16_swap_b32', 'v_permlane32_swap_b32'):
        for i in range(4): a(f'v_mov_b32 v{40+i}, v{base+i}')
        for i in range(4): a(f'{sw} v{base+i}, v{40+i}')
        for i in range(4): a(f'v_add_f32 v{base+i}, v{base+i}, v{40+i}')
red16(20)
rnd_pairs([20, 21, 22, 23], 5)
unpack(24, 12, 2)
unpack(28, 16, 2)
unpack(32, 10, 2)
for i in range(4): a(f'v_mul_f32 v{20+i}, v{20+i}, v{24+i}')
rnd_pairs([20, 21, 22, 23], 5)
for i in range(4): a(f'v_add_f32 v{20+i}, v{20+i}, v{32+i}')
rnd_pairs([20, 21, 22, 23], 5)
a(f'''s_mov_b32 {T4}, {FPB}
s_mov_b32 {T2}, {FPB + 16*2048}
s_mov_b32 {T3}, {FPB + 32*2048}
s_mov_b32 {T1}, {FPB + 48*2048}
v_and_b32 v12, 7, v6
v_lshl_add_u32 v12, v12, 11, v8
v_mov_b32 v13, {T1}
v_add_u32 v12, v12, v13''')
poll([(48, 9, T4, 0), (52, 9, T2, 0), (56, 9, T3, 0), (60, 12, '0', 0)])
stamp(7)
for b in (48, 52, 56, 60): unpack24(b)
a('s_mov_b32 exec_lo, 0\ns_mov_b32 exec_hi, -1')
for i in range(4): a(f'v_mov_b32 v{60+i}, 0')
a('s_mov_b64 exec, -1')
for i in range(4): a(f'v_add_f32 v{48+i}, v{48+i}, v{52+i}\nv_add_f32 v{56+i}, v{56+i}, v{60+i}')
for i in range(4): a(f'v_add_f32 v{48+i}, v{48+i}, v{56+i}')
red16(48)
rnd_pairs([48, 49, 50, 51], 5)
for i in range(4): a(f'v_mul_f32 v{48+i}, v{48+i}, v{28+i}')
rnd_pairs([48, 49, 50, 51], 5)
for i in range(4): a(f'v_add_f32 v{48+i}, v{48+i}, v{20+i}')
DELAY = [int(x.split('=')[1]) for x in sys.argv if x.startswith('--delay=')]
if DELAY:
    a(f's_mov_b32 {T0}, {DELAY[0]}\nL_delay:\nv_add_f32 v60, v60, v60\ns_sub_u32 {T0}, {T0}, 1\ns_cbranch_scc0 L_delay')
if SCALE_OUT is not None:
    for i in range(4): a(f'v_mul_f32 v{48+i}, {hex(f2u(SCALE_OUT))}, v{48+i}')
a(f'''v_cvt_pk_bf16_f32 v52, v48, v49
v_cvt_pk_bf16_f32 v53, v50, v51
s_mov_b64 exec, 15
buffer_store_dwordx2 v[52:53], v7, {RB}, 0 offen
s_cmp_lg_u32 {ID}, 0
s_cbranch_scc1 L_red_done
s_mov_b64 exec, 1
s_add_u32 {T0}, {EP}, 1
v_mov_b32 v5, 0
v_mov_b32 v6, {T0}
buffer_store_dword v6, v5, {WS}, 0 offen sc1
L_red_done:
s_mov_b64 exec, -1''')
stamp(8)
a('s_branch L_end')

a('L_ffn:')
get_tag()
a('L_ffn_notag:')
r4_geom(10, 11, 12, 13, 14)
a(f'v_lshlrev_b32 v15, 8, v1\ns_mov_b32 {T4}, {QB}')
poll([(16, 15, T4, 0)], sleep=4)
stamp(4)
a(f'''s_cmp_lt_u32 {WV}, 4
s_cselect_b32 s36, s{S_WG}, s{S_WU}
s_cselect_b32 s37, s{S_WG+1}, s{S_WU+1}
s_mov_b32 s38, {512*3584}
s_mov_b32 s39, 0x20000
s_movk_i32 {T1}, 3584
v_mul_lo_u32 v15, v10, {T1}
s_lshl_b32 {T1}, {ID}, 6
v_add3_u32 v15, v15, v11, {T1}''')
load_tile(L_, 15, RA, 3584)
L2_, F2_ = 96, 128
srd(RB, S_WD, 1792*1024); srd(RC, S_X, 1024)
a(f'''s_cmp_ge_u32 {WV}, 4
s_cbranch_scc1 L_ffn_nodown
s_lshl_b32 {T1}, {ID}, 15
s_lshl_b32 {T0}, {WV}, 8
s_add_u32 {T1}, {T1}, {T0}
v_lshlrev_b32 v15, 13, v3
v_lshl_add_u32 v15, v2, 4, v15
v_add_u32 v15, {T1}, v15''')
load_tile(L2_, 15, RB, 1024)
a('L_ffn_nodown:')
a(f'''s_lshl_b32 {T0}, {WV}, 4
v_add_u32 v16, {T0}, v2
v_lshl_add_u32 v17, v16, 2, v3
v_lshlrev_b32 v18, 1, v17
buffer_load_ushort v19, v18, {RC}, 0 offen
v_lshlrev_b32 v20, 4, v16
s_mov_b32 {T4}, {MODB + 256*16}''')
poll([(128, 20, T4, 0), (132, 20, T4, 2048)], sleep=2)
a(f's_mov_b32 {T4}, {MODB + 512*16}')
poll([(136, 20, T4, 0)], sleep=2)
stamp(5)
a(f'''v_cmp_gt_u32 vcc, 2, v3
v_and_b32 v21, 1, v3
v_cmp_eq_u32 {TP}, 0, v21
v_cndmask_b32 v128, v129, v128, vcc
v_cndmask_b32 v132, v133, v132, vcc
v_cndmask_b32 v136, v137, v136, vcc''')
for b, d in ((128, 160), (132, 161), (136, 162)):
    a(f'v_lshlrev_b32 v{b+1}, 16, v{b}\nv_and_b32 v{b}, {MSK}, v{b}\nv_cndmask_b32 v{d}, v{b}, v{b+1}, {TP}')
a(f'v_lshlrev_b32 v19, 16, v19\nv_add_f32 v162, 1.0, v162')
rnd1(162, 162)
perm_tile(F_, L_)
a(f's_cmp_ge_u32 {WV}, 4\ns_cbranch_scc1 L_ffn_noperm2')
perm_tile(F2_, L2_)
a('L_ffn_noperm2:')
a(f'v_lshl_add_u32 v21, v3, 13, v20\ns_mov_b32 {T4}, {APB}\ns_mov_b32 {T2}, {APB+4096}')
ST = 8192
H2 = 8448
TT = 9472
a(f'''v_lshlrev_b32 v22, 4, v13
s_lshl_b32 {T0}, {WV}, 3
v_lshrrev_b32 v23, 1, v3
v_and_b32 v24, 1, v3
v_lshlrev_b32 v23, 6, v23
v_lshl_add_u32 v23, v24, 2, v23
v_add_u32 v23, {T0}, v23
v_lshrrev_b32 v24, 5, v1
v_lshlrev_b32 v24, 6, v24
v_lshl_add_u32 v24, v2, 2, v24''')
poll([(L_, 21, T4, 0), (L_+4, 21, T4, 2048), (L_+8, 21, T2, 0), (L_+12, 21, T2, 2048)])
stamp(6)
for i in range(4): unpack24(L_+4*i)
a(f'''v_pk_add_f32 {vr(L_,2)}, {vr(L_,2)}, {vr(L_+4,2)}
v_pk_add_f32 {vr(L_+2,2)}, {vr(L_+2,2)}, {vr(L_+6,2)}
v_pk_add_f32 {vr(L_+8,2)}, {vr(L_+8,2)}, {vr(L_+12,2)}
v_pk_add_f32 {vr(L_+10,2)}, {vr(L_+10,2)}, {vr(L_+14,2)}
v_pk_add_f32 {vr(L_,2)}, {vr(L_,2)}, {vr(L_+8,2)}
v_pk_add_f32 {vr(L_+2,2)}, {vr(L_+2,2)}, {vr(L_+10,2)}
v_permlane32_swap_b32 v{L_}, v{L_+2}
v_permlane32_swap_b32 v{L_+1}, v{L_+3}
v_add_f32 v{L_}, v{L_}, v{L_+2}
v_add_f32 v{L_+1}, v{L_+1}, v{L_+3}
v_permlane16_swap_b32 v{L_}, v{L_+1}
v_add_f32 v25, v{L_}, v{L_+1}''')
rnd1(25, 25)
a('v_mul_f32 v25, v25, v160'); rnd1(25, 25)
a('v_add_f32 v25, v25, v19'); rnd1(25, 25)
a(f'''v_mov_b32 v26, v25
v_mul_f32 v27, v25, v25
v_permlane32_swap_b32 v26, v27
v_add_f32 v26, v26, v27''')
for c in ('quad_perm:[1,0,3,2]', 'quad_perm:[2,3,0,1]', 'row_half_mirror', 'row_mirror'):
    a(f'v_add_f32_dpp v26, v26, v26 {c} {DPPM}')
a(f'''s_mov_b32 exec_lo, 0x00010001
s_mov_b32 exec_hi, 0x00010001
ds_write_b32 v23, v26 offset:{ST}
s_mov_b64 exec, -1
s_waitcnt lgkmcnt(0)
s_barrier
ds_read_b32 v26, v24 offset:{ST}
s_waitcnt lgkmcnt(0)''')
for c in ('quad_perm:[1,0,3,2]', 'quad_perm:[2,3,0,1]', 'row_half_mirror', 'row_mirror'):
    a(f'v_add_f32_dpp v26, v26, v26 {c} {DPPM}')
a(f'''v_mul_f32 v26, {hex(f2u(1/512))}, v26
v_mov_b32 v27, v26
v_permlane32_swap_b32 v26, v27
v_fma_f32 v27, -v26, v26, v27
v_max_f32 v27, 0, v27''')
ln_scalars(26, 27, 5)
a('v_sub_f32 v25, v25, v26'); rnd1(25, 25)
div_nr(25, 27, 5, 6); rnd1(25, 25)
a('v_mul_f32 v25, v25, v162'); rnd1(25, 25)
a(f'''v_add_f32 v25, v25, v161
v_cvt_pk_bf16_f32 v25, v25, v25
ds_write_b16 v18, v25 offset:{H2}
s_waitcnt lgkmcnt(0)
s_barrier
ds_read_b128 {vr(AF_,4)}, v22 offset:{H2}
s_waitcnt lgkmcnt(0)''')
stamp(7)
gemv_core(AF_, F_, ACC_)
gemv_write_r4(ACC_, 12)
a('s_waitcnt lgkmcnt(0)\ns_barrier')
a(f's_cmp_ge_u32 {WV}, 4\ns_cbranch_scc1 L_end')
a(f'v_mul_u32_u24 v15, 80, v1')
gemv_reduce(20, L_, 15)
rnd1(20, 20)
K1 = -2 * 0.7978845608028654 * 1.4426950408889634
a(f'''v_mov_b32 v21, v20
v_permlane32_swap_b32 v20, v21
v_mul_f32 v22, v20, v20
v_mov_b32 v23, {hex(f2u(K1))}
v_mov_b32 v24, {hex(f2u(K1*0.044715))}
v_fma_f32 v22, v22, v24, v23
v_mul_f32 v22, v22, v20
v_exp_f32 v22, v22
v_add_f32 v22, 1.0, v22
v_rcp_f32 v22, v22
v_mul_f32 v20, v20, v22''')
rnd1(20, 20)
a(f'''v_mul_f32 v20, v20, v21
v_cvt_pk_bf16_f32 v20, v20, v20
s_lshl_b32 {T0}, {WV}, 7
v_lshl_add_u32 v21, v1, 1, {T0}
v_lshl_add_u32 v22, v3, 4, {T0}
ds_write_b16 v21, v20 offset:{TT}
s_waitcnt lgkmcnt(0)
ds_read_b128 {vr(AF_,4)}, v22 offset:{TT}
s_waitcnt lgkmcnt(0)''')
gemv_core(AF_, F2_, ACC_)
a(f'''v_cmp_gt_u32 vcc, 16, v1
s_lshl_b32 {T0}, {ID}, 11
s_lshl_b32 {T1}, {WV}, 9
s_add_u32 {T0}, {T0}, {T1}
s_add_u32 {T0}, {T0}, {FPB}
v_lshlrev_b32 v15, 5, v2
v_lshl_add_u32 v15, v3, 4, v15''')
for i in range(4): a(f'v_cndmask_b32 v{20+i}, v{ACC_+16+4*i}, v{ACC_+4*i}, vcc')
pack24(24, 20, 21, 22, 23)
a(f'''s_mov_b32 exec_hi, 0
buffer_store_dwordx4 v[24:27], v15, {WS}, {T0} offen sc1
s_mov_b64 exec, -1''')
stamp(8)
a('s_branch L_end')

QL = 0; OL = 1024; OW = 2112; MLL = OL + 8*OW; DP = MLL + 256
a('L_attn:')
a(f'''s_sub_u32 {ID}, s2, 96
s_and_b32 {T2}, {ID}, 7
s_lshr_b32 {T3}, {ID}, 3
s_cmp_eq_u32 {WV}, 8
s_cbranch_scc1 L_comm''')
srd(RA, S_K, 0x8000000); srd(RB, S_V, 0x8000000)
KF, VL, VF, SC, PF, OA = 32, 64, 32, 16, 24, 96
a(f'''s_lshl_b32 {T0}, {T2}, 24
s_lshl_b32 {T1}, {T3}, 16
s_add_u32 {T0}, {T0}, {T1}
s_lshl_b32 {T1}, {WV}, 13
s_add_u32 {T0}, {T0}, {T1}
s_add_u32 {T4}, {T0}, {61440*256}
s_add_u32 {T1}, {T4}, 4096
v_and_b32 v5, 3, v2
v_lshrrev_b32 v6, 2, v2
v_lshl_add_u32 v5, v5, 2, v6
v_lshlrev_b32 v5, 8, v5
v_lshl_add_u32 v5, v3, 4, v5
v_lshlrev_b32 v6, 4, v1''')
for T in range(2):
    for kk in range(4):
        a(f'buffer_load_dwordx4 {vr(KF+16*T+4*kk,4)}, v5, {RA}, {T4 if T==0 else T1} offen offset:{64*kk} nt')
for j in range(8):
    a(f'buffer_load_dwordx4 {vr(VL+4*j,4)}, v6, {RB}, {T4 if j<4 else T1} offen offset:{1024*(j&3)} nt')
stamp(2)
a(f'''v_and_b32 v7, 3, v2
v_lshlrev_b32 v7, 8, v7
v_lshl_add_u32 v7, v3, 4, v7
s_mul_i32 {T0}, {WV}, {OW}
v_mul_u32_u24 v8, 528, v2
v_lshl_add_u32 v8, v3, 7, v8
v_add_u32 v8, {T0}, v8
s_lshl_b32 {T0}, {WV}, 3
v_lshl_add_u32 v9, v2, 6, {T0}''')
srd(RC, S_WO, 4096*1024)
JJ = 's66'; CB = 's67'; HG = 's68'
a(f'''s_and_b32 {T0}, {T3}, 1
s_lshl_b32 {JJ}, {T2}, 1
s_add_u32 {JJ}, {JJ}, {T0}
s_lshr_b32 {CB}, {ID}, 4
s_lshr_b32 {T0}, {WV}, 2
s_lshl_b32 {HG}, {JJ}, 1
s_add_u32 {HG}, {HG}, {T0}
v_lshrrev_b32 v10, 3, v2
v_lshl_add_u32 v10, v10, 2, v3
v_lshlrev_b32 v10, 10, v10
v_and_b32 v11, 7, v2
v_lshl_add_u32 v10, v11, 4, v10
s_lshl_b32 {T0}, {JJ}, 18
s_lshl_b32 {T1}, {WV}, 15
s_add_u32 {T0}, {T0}, {T1}
s_lshl_b32 {T1}, {CB}, 7
s_add_u32 {T0}, {T0}, {T1}
v_add_u32 v10, {T0}, v10''')
get_tag()
a('s_barrier')
stamp(3)
WL, WF = 132, 148
load_tile(WL, 10, RC, 8192, nl=4)
for kk in range(4): a(f'ds_read_b128 {vr(OA+4*kk,4)}, v7 offset:{QL+64*kk}')
a('s_waitcnt vmcnt(12) lgkmcnt(0)')
stamp(4)
for T in range(2):
    for kk in range(4):
        a(f'v_mfma_f32_16x16x32_bf16 {vr(SC+4*T,4)}, {vr(KF+16*T+4*kk,4)}, {vr(OA+4*kk,4)}, {"0" if kk==0 else vr(SC+4*T,4)}')
S8 = list(range(SC, SC+8))
rnd_pairs(S8, 5)
for r in S8: a(f'v_mul_f32 v{r}, {hex(f2u(128**-0.5))}, v{r}')
rnd_pairs(S8, 5)
a(f'''v_max3_f32 v12, v{SC}, v{SC+1}, v{SC+2}
v_max3_f32 v13, v{SC+3}, v{SC+4}, v{SC+5}
v_max3_f32 v12, v12, v{SC+6}, v{SC+7}
v_max_f32 v12, v12, v13
v_mov_b32 v13, v12
v_permlane16_swap_b32 v12, v13
v_max_f32 v12, v12, v13
v_mov_b32 v13, v12
v_permlane32_swap_b32 v12, v13
v_max_f32 v12, v12, v13''')
for r in S8: a(f'v_sub_f32 v{r}, v{r}, v12')
for r in S8: a(f'v_mul_f32 v{r}, {hex(LOG2E)}, v{r}')
for r in S8: a(f'v_exp_f32 v{r}, v{r}')
for i in range(4): a(f'v_cvt_pk_bf16_f32 v{PF+i}, v{SC+2*i}, v{SC+2*i+1}')
for i in range(4): a(f'v_mov_b32 v{28+i}, 0x3f803f80')
a('s_waitcnt vmcnt(4)')
stamp(5)
perm_tile(VF, VL)
for dd in range(8):
    a(f'v_mfma_f32_16x16x32_bf16 {vr(OA+4*dd,4)}, {vr(VF+4*dd,4)}, {vr(PF,4)}, 0')
a(f'v_mfma_f32_16x16x32_bf16 {vr(OA+32,4)}, v[28:31], {vr(PF,4)}, 0')
a('s_mov_b32 exec_lo, 0x000F000F\ns_mov_b32 exec_hi, 0x000F000F')
for dd in range(8):
    a(f'ds_write_b128 v8, {vr(OA+4*dd,4)} offset:{OL+16*dd}')
a(f'''s_mov_b64 exec, 15
ds_write2_b32 v9, v12, v{OA+32} offset0:{0} offset1:{1}''' .replace('v9,', 'v14,') if False else 's_mov_b64 exec, 15')
a(f'''v_add_u32 v14, {MLL}, v9
ds_write2_b32 v14, v12, v{OA+32} offset0:0 offset1:1
s_mov_b64 exec, -1
s_waitcnt lgkmcnt(0)
s_barrier''')
stamp(6)
a(f'''s_cmp_ge_u32 {WV}, 3
s_cbranch_scc1 L_attn_D
s_cmp_eq_u32 {WV}, 2
s_cbranch_scc1 L_attn_ml
v_lshrrev_b32 v12, 5, v1
s_lshl_b32 {T0}, {WV}, 1
v_add_u32 v12, {T0}, v12
v_and_b32 v13, 7, v1
v_lshlrev_b32 v14, 6, v12
v_lshl_add_u32 v14, v13, 3, v14
ds_read_b32 v15, v14 offset:{MLL}
v_mul_u32_u24 v16, 528, v12
v_and_b32 v17, 31, v1
v_lshl_add_u32 v16, v17, 4, v16''')
for w in range(8): a(f'ds_read_b128 {vr(KF+4*w,4)}, v16 offset:{OL+OW*w}')
a(f'''s_lshl_b32 {T0}, {T2}, 15
s_lshl_b32 {T1}, {T3}, 9
s_add_u32 {T0}, {T0}, {T1}
s_add_u32 {T0}, {T0}, {OPB}
v_lshlrev_b32 v18, 13, v12
v_lshl_add_u32 v18, v17, 4, v18
s_waitcnt lgkmcnt(8)
v_max_f32_dpp v19, v15, v15 row_ror:1 {DPPM}
v_max_f32_dpp v19, v19, v19 row_ror:2 {DPPM}
v_max_f32_dpp v19, v19, v19 row_ror:4 {DPPM}
v_sub_f32 v15, v15, v19
v_mul_f32 v15, {hex(LOG2E)}, v15
v_exp_f32 v15, v15
s_waitcnt lgkmcnt(0)''')
for i in range(4): a(f'v_mul_f32_dpp v{20+i}, v15, v{KF+i} row_newbcast:0 {DPPM}')
for w in range(1, 8):
    for i in range(4): a(f'v_fmac_f32_dpp v{20+i}, v15, v{KF+4*w+i} row_newbcast:{w} {DPPM}')
pack24(24, 20, 21, 22, 23)
a(f'''buffer_store_dwordx4 v[24:27], v18, {WS}, {T0} offen sc1
s_branch L_attn_D
L_attn_ml:
v_and_b32 v13, 7, v1
v_lshlrev_b32 v14, 6, v3
v_lshl_add_u32 v14, v13, 3, v14
ds_read_b64 v[16:17], v14 offset:{MLL}
s_lshl_b32 {T0}, {T2}, 10
s_lshl_b32 {T1}, {T3}, 4
s_add_u32 {T0}, {T0}, {T1}
s_add_u32 {T0}, {T0}, {MLB}
v_lshlrev_b32 v18, 8, v3
s_waitcnt lgkmcnt(0)
v_max_f32_dpp v24, v16, v16 row_ror:1 {DPPM}
v_max_f32_dpp v24, v24, v24 row_ror:2 {DPPM}
v_max_f32_dpp v24, v24, v24 row_ror:4 {DPPM}
v_sub_f32 v16, v16, v24
v_mul_f32 v16, {hex(LOG2E)}, v16
v_exp_f32 v16, v16
v_mul_f32 v25, v16, v17
v_add_f32_dpp v25, v25, v25 row_ror:1 {DPPM}
v_add_f32_dpp v25, v25, v25 row_ror:2 {DPPM}
v_add_f32_dpp v25, v25, v25 row_ror:4 {DPPM}
v_mov_b32 v26, {TAG}
v_mov_b32 v27, {TAG}
s_mov_b32 exec_lo, 0x00010001
s_mov_b32 exec_hi, 0x00010001
buffer_store_dwordx4 v[24:27], v18, {WS}, {T0} offen sc1
s_mov_b64 exec, -1
L_attn_D:''')
stamp(7)
a(f'''v_and_b32 v12, 3, v2
v_lshrrev_b32 v13, 3, v2
v_lshl_add_u32 v12, v13, 2, v12
v_bfe_u32 v13, v2, 2, 1
v_lshl_add_u32 v13, v13, 2, v3
v_lshlrev_b32 v14, 10, v12
v_lshl_add_u32 v14, v13, 4, v14
v_lshlrev_b32 v15, 5, v12
s_lshl_b32 {T0}, {HG}, 13
s_and_b32 {T1}, {WV}, 3
s_lshl_b32 {T1}, {T1}, 7
s_add_u32 {T4}, {T0}, {T1}
s_add_u32 {T4}, {T4}, {OPB}
s_lshl_b32 {T2}, {HG}, 8
s_add_u32 {T2}, {T2}, {MLB}
v_and_b32 v16, 7, v2
v_mul_u32_u24 v16, 640, v16
v_lshrrev_b32 v17, 3, v2
v_lshl_add_u32 v16, v17, 2, v16
s_lshl_b32 {T0}, {WV}, 3
s_add_u32 {T0}, {T0}, {DP}
v_add_u32 v16, {T0}, v16
s_waitcnt vmcnt(0)''')
perm_tile(WF, WL, nl=4)
poll([(32, 14, T4, 0), (36, 14, T4, 512), (40, 15, T2, 0), (44, 15, T2, 16)])
stamp(8)
unpack24(32); unpack24(36)
RED3 = ('quad_perm:[1,0,3,2]', 'quad_perm:[2,3,0,1]', 'row_ror:8')
a('v_max_f32 v18, v40, v44')
for c in RED3: a(f'v_max_f32_dpp v18, v18, v18 {c} {DPPM}')
a(f'''v_sub_f32 v40, v40, v18
v_sub_f32 v44, v44, v18
v_mul_f32 v40, {hex(LOG2E)}, v40
v_mul_f32 v44, {hex(LOG2E)}, v44
v_exp_f32 v40, v40
v_exp_f32 v44, v44
v_mul_f32 v48, v40, v41
v_fmac_f32 v48, v44, v45''')
for i in range(4): a(f'v_mul_f32 v{32+i}, v40, v{32+i}')
for i in range(4): a(f'v_fmac_f32 v{32+i}, v44, v{36+i}')
for c in RED3:
    for r in (48, 32, 33, 34, 35): a(f'v_add_f32_dpp v{r}, v{r}, v{r} {c} {DPPM}')
a('v_rcp_f32 v48, v48')
for i in range(4): a(f'v_mul_f32 v{32+i}, v48, v{32+i}')
a('v_cvt_pk_bf16_f32 v36, v32, v33\nv_cvt_pk_bf16_f32 v37, v34, v35')
for dd in range(8):
    a(f'v_mfma_f32_16x16x16_bf16 {vr(OA+4*dd,4)}, v[36:37], {vr(WF+2*dd,2)}, 0')
a('s_mov_b32 exec_lo, 0xFF0000FF\ns_mov_b32 exec_hi, 0')
for dd in range(0, 8, 2):
    a(f'ds_write2_b32 v16, v{OA+4*dd}, v{OA+4*dd+4} offset0:{20*dd} offset1:{20*dd+20}')
a(f'''s_mov_b64 exec, -1
s_waitcnt lgkmcnt(0)
s_barrier
s_cmp_lg_u32 {WV}, 0
s_cbranch_scc1 L_end
v_mul_u32_u24 v15, 80, v1
v_add_u32 v15, {DP}, v15''')
gemv_reduce(20, 32, 15)
quad_gather(20, 21, 22, 23)
pack24(24, 20, 21, 22, 23)
a(f'''s_lshl_b32 {T0}, {JJ}, 11
s_lshl_b32 {T1}, {CB}, 8
s_add_u32 {T0}, {T0}, {T1}
s_add_u32 {T0}, {T0}, {APB}
v_lshlrev_b32 v15, 2, v1
s_mov_b32 exec_lo, 0x11111111
s_mov_b32 exec_hi, 0x11111111
buffer_store_dwordx4 v[24:27], v15, {WS}, {T0} offen sc1
s_mov_b64 exec, -1''')
stamp(9)
a('s_branch L_end')
a('L_comm:')
get_tag()
a(f'''s_lshl_b32 {T4}, {T2}, 11
s_add_u32 {T4}, {T4}, {QB}
v_lshlrev_b32 v5, 4, v1
v_lshlrev_b32 v6, 3, v1''')
poll([(8, 5, T4, 0), (12, 5, T4, 1024)], sleep=1)
stamp(3)
a(f'''ds_write_b64 v6, v[8:9] offset:{QL}
ds_write_b64 v6, v[12:13] offset:{QL+512}
s_waitcnt lgkmcnt(0)
s_barrier''')
a('L_end:')
end()
a('L_exit:\ns_endpgm')
a.raw(f'''.section .rodata,"a"
.p2align 6
.amdhsa_kernel {NAME}_kernel
  .amdhsa_next_free_vgpr 168
  .amdhsa_next_free_sgpr 102
  .amdhsa_accum_offset 168
  .amdhsa_group_segment_fixed_size 0
  .amdhsa_kernarg_size 112
  .amdhsa_user_sgpr_count 2
  .amdhsa_user_sgpr_kernarg_segment_ptr 1
  .amdhsa_system_sgpr_workgroup_id_x 1
  .amdhsa_float_denorm_mode_32 3
.end_amdhsa_kernel''')
open(OUT, 'w').write(a.text())
print('wrote', OUT, 'pads', a.npad)
```

```python
import sys
sys.path.insert(0, 'gen')
from asmlib import Asm
NAME = 'adaLN_cond__sliding_block_cached__geglu_ffn__decode'
PROF = '--prof' in sys.argv
SCALE_OUT = None
for x in sys.argv:
    if x.startswith('--scale='): SCALE_OUT = float(x.split('=')[1])
OUT = [x for x in sys.argv[1:] if not x.startswith('--')][0]

import struct
def f2u(f): return struct.unpack('<I', struct.pack('<f', f))[0]

MODB = 0x1000
QB   = 0x4000
MLB  = 0x8000
APB  = 0x10000
FPB  = 0x20000
OPB  = 0x40000
PRB  = 0x100000
WSN  = 0x200000

S_X, S_K, S_V, S_WQ, S_WO, S_BX, S_WG, S_WU, S_WD, S_C, S_WM, S_OUT, S_DBG, S_WS = [4 + 2*i for i in range(14)]
WS = 's[32:35]'; RA = 's[36:39]'; RB = 's[40:43]'; RC = 's[44:47]'
TAG = 's48'; WV = 's49'; PLO = 's50'; PHI = 's51'; T0 = 's52'; T1 = 's53'; CNT = 's54'; EP = 's55'
ID = 's56'; T2 = 's57'; T3 = 's58'; T4 = 's59'; MSK = 's60'; PK0 = 's61'; PK1 = 's62'; PK2 = 's63'; UP0 = 's64'; UP1 = 's65'
TP = 's[52:53]'
PS0 = 70
a = Asm()
nstamp = [0]
def stamp(i):
    if PROF: a(f's_memrealtime s[{PS0+2*i}:{PS0+2*i+1}]')
NST = 14
DBG = '--dbg' in sys.argv
def dbg_dump():
    a(f'''s_waitcnt lgkmcnt(0)
s_mov_b64 exec, 1
s_mov_b32 s36, s{S_DBG}
s_mov_b32 s37, s{S_DBG+1}
s_mov_b32 s38, 256
s_mov_b32 s39, 0x20000
v_mov_b32 v1, 0
s_not_b32 {T0}, s{PS0}
v_mov_b32 v2, {T0}
buffer_atomic_umax v2, v1, s[36:39], 0 offen
s_cmp_lg_u32 {WV}, 0
s_cbranch_scc1 L_dbg_done''')
    def put(slot, st):
        a(f'v_mov_b32 v2, s{PS0+2*st}\nbuffer_atomic_umax v2, v1, s[36:39], 0 offen offset:{4*slot}')
    put(1, 0)
    a('s_cmp_ge_u32 s2, 32\ns_cbranch_scc1 L_dbg1')
    put(2, 2); put(3, 3)
    a('s_branch L_dbg_done\nL_dbg1:\ns_cmp_ge_u32 s2, 64\ns_cbranch_scc1 L_dbg2')
    put(4, 3); put(5, 4); put(14, 7); put(15, 8)
    a('s_branch L_dbg_done\nL_dbg2:\ns_cmp_lt_u32 s2, 96\ns_cbranch_scc1 L_dbg_done\ns_cmp_ge_u32 s2, 224\ns_cbranch_scc1 L_dbg3')
    put(6, 3); put(7, 5); put(8, 7); put(9, 8); put(10, 9)
    a('s_branch L_dbg_done\nL_dbg3:')
    put(11, 5); put(12, 6); put(13, 8)
    a('L_dbg_done:')
def prof_dump():
    if DBG: return dbg_dump()
    if not PROF: return
    a(f'''s_waitcnt lgkmcnt(0)
s_mov_b64 exec, 1
s_lshl_b32 {T0}, s2, 10
s_lshl_b32 {T1}, {WV}, 6
s_add_u32 {T0}, {T0}, {T1}
s_add_u32 {T0}, {T0}, {PRB}
v_mov_b32 v1, {T0}''')
    for i in range(NST):
        a(f'v_mov_b32 v2, s{PS0+2*i}\nbuffer_store_dword v2, v1, {WS}, 0 offen offset:{4*i}')
def end():
    prof_dump(); a('s_endpgm')

def srd(r, base, nbytes):
    n = int(r[2:].split(':')[0])
    a(f'''s_mov_b32 s{n}, s{base}
s_mov_b32 s{n+1}, s{base+1}
s_mov_b32 s{n+2}, {nbytes}
s_mov_b32 s{n+3}, 0x20000''')
def vr(b, n): return f'v[{b}:{b+n-1}]'

def load_tile(L, voff, r, stride, nl=8, flags='nt'):
    for j in range(nl):
        o = j * stride
        if o < 4096:
            a(f'buffer_load_dwordx4 {vr(L+4*j,4)}, v{voff}, {r}, 0 offen offset:{o} {flags}')
        else:
            a(f's_mov_b32 {T0}, {o}\nbuffer_load_dwordx4 {vr(L+4*j,4)}, v{voff}, {r}, {T0} offen {flags}')
def perm_tile(F, L, nl=8):
    np_ = nl // 2
    for c in range(4):
        for p in range(np_):
            a(f'v_perm_b32 v{F+(2*c)*np_+p}, v{L+4*(2*p+1)+c}, v{L+4*(2*p)+c}, {PLO}')
            a(f'v_perm_b32 v{F+(2*c+1)*np_+p}, v{L+4*(2*p+1)+c}, v{L+4*(2*p)+c}, {PHI}')
lab = [0]
def newlab(p):
    lab[0] += 1; return f'L_{p}_{lab[0]}'
def poll(loads, sleep=0):
    L = newlab('poll'); D = newlab('pdone')
    a(f'{L}:')
    for d, vo, so, im in loads:
        a(f'buffer_load_dwordx4 {vr(d,4)}, v{vo}, {WS}, {so} offen offset:{im} sc1')
    a('s_waitcnt vmcnt(0)')
    for i, (d, vo, so, im) in enumerate(loads):
        if i == 0: a(f'v_cmp_ne_u32 vcc, {TAG}, v{d+3}')
        else: a(f'v_cmp_ne_u32 {TP}, {TAG}, v{d+3}\ns_or_b64 vcc, vcc, {TP}')
    a(f's_cbranch_vccz {D}')
    if sleep: a(f's_sleep {sleep}')
    a(f's_sub_u32 {CNT}, {CNT}, 1\ns_cbranch_scc0 {L}')
    a(f'{D}:')
def rnd1(d, s):
    a(f'v_cvt_pk_bf16_f32 v{d}, v{s}, v{s}\nv_and_b32 v{d}, {MSK}, v{d}')
def rnd_pairs(regs, tmp):
    for i in range(0, len(regs), 2):
        x, y = regs[i], regs[i+1]
        a(f'v_cvt_pk_bf16_f32 v{tmp}, v{x}, v{y}\nv_lshlrev_b32 v{x}, 16, v{tmp}\nv_and_b32 v{y}, {MSK}, v{tmp}')
def unpack(dst, src, n):
    for i in range(n):
        a(f'v_lshlrev_b32 v{dst+2*i}, 16, v{src+i}\nv_and_b32 v{dst+2*i+1}, {MSK}, v{src+i}')
DPPM = 'row_mask:0xf bank_mask:0xf'
def wave_reduce(op, t, u):
    for c in ('quad_perm:[1,0,3,2]', 'quad_perm:[2,3,0,1]', 'row_half_mirror', 'row_mirror'):
        a(f'{op}_dpp v{t}, v{t}, v{t} {c} {DPPM}')
    a(f'v_mov_b32 v{u}, v{t}\nv_permlane16_swap_b32 v{t}, v{u}\n{op} v{t}, v{t}, v{u}')
    a(f'v_mov_b32 v{u}, v{t}\nv_permlane32_swap_b32 v{t}, v{u}\n{op} v{t}, v{t}, v{u}')
def pack24(G, x0, x1, x2, x3):
    a(f'''v_perm_b32 v{G}, v{x0}, v{x3}, {PK0}
v_perm_b32 v{G+1}, v{x1}, v{x3}, {PK1}
v_perm_b32 v{G+2}, v{x2}, v{x3}, {PK2}
v_mov_b32 v{G+3}, {TAG}''')
def unpack24(G):
    a(f'''v_perm_b32 v{G+3}, v{G+1}, v{G}, {UP0}
v_perm_b32 v{G+3}, v{G+2}, v{G+3}, {UP1}''')
LOG2E = f2u(1.4426950408889634)

def layernorm8(X, T, tmp, tmp2, tmp3):
    a(f'v_add_f32 v{tmp}, v{X}, v{X+1}')
    for i in range(2, 8): a(f'v_add_f32 v{tmp}, v{tmp}, v{X+i}')
    wave_reduce('v_add_f32', tmp, tmp2)
    a(f'v_mul_f32 v{tmp}, {hex(f2u(1/512))}, v{tmp}')
    for i in range(8): a(f'v_sub_f32 v{T+i}, v{X+i}, v{tmp}')
    a(f'v_mul_f32 v{tmp3}, v{T}, v{T}')
    for i in range(1, 8): a(f'v_fmac_f32 v{tmp3}, v{T+i}, v{T+i}')
    wave_reduce('v_add_f32', tmp3, tmp2)
    a(f'v_mul_f32 v{tmp3}, {hex(f2u(1/512))}, v{tmp3}')
    ln_scalars(tmp, tmp3, tmp2)
    for i in range(8): a(f'v_sub_f32 v{X+i}, v{X+i}, v{tmp}')
    rnd_pairs(list(range(X, X+8)), T)
    for i in range(8): div_nr(X+i, tmp3, tmp2, T)
    rnd_pairs(list(range(X, X+8)), T)
def ln_scalars(mean, var, rcp):
    rnd1(mean, mean); rnd1(var, var)
    a(f'v_add_f32 v{var}, {hex(f2u(1e-5))}, v{var}')
    rnd1(var, var)
    a(f'v_sqrt_f32 v{var}, v{var}')
    rnd1(var, var)
    a(f'v_rcp_f32 v{rcp}, v{var}')
def div_nr(x, den, rcp, t):
    a(f'''v_mul_f32 v{t}, v{x}, v{rcp}
v_fma_f32 v{x}, -v{t}, v{den}, v{x}
v_fma_f32 v{x}, v{x}, v{rcp}, v{t}''')

def gemv_core(AF, F, ACC):
    for dd in range(8):
        a(f'v_mfma_f32_16x16x32_bf16 {vr(ACC+4*dd,4)}, {vr(AF,4)}, {vr(F+4*dd,4)}, 0')
def gemv_write_r4(ACC, vaddr):
    a('s_mov_b32 exec_lo, 0x00F0000F\ns_mov_b32 exec_hi, 0xF0000F00')
    for dd in range(0, 8, 2):
        a(f'ds_write2_b32 v{vaddr}, v{ACC+4*dd}, v{ACC+4*dd+4} offset0:{20*dd} offset1:{20*dd+20}')
    a('s_mov_b64 exec, -1')
def gemv_reduce(dst, T, vaddr):
    for i in range(4): a(f'ds_read_b128 {vr(T+4*i,4)}, v{vaddr} offset:{16*i}')
    a('s_waitcnt lgkmcnt(0)')
    a(f'v_pk_add_f32 {vr(T,2)}, {vr(T,2)}, {vr(T+2,2)}\nv_pk_add_f32 {vr(T+4,2)}, {vr(T+4,2)}, {vr(T+6,2)}')
    a(f'v_pk_add_f32 {vr(T+8,2)}, {vr(T+8,2)}, {vr(T+10,2)}\nv_pk_add_f32 {vr(T+12,2)}, {vr(T+12,2)}, {vr(T+14,2)}')
    a(f'v_pk_add_f32 {vr(T,2)}, {vr(T,2)}, {vr(T+4,2)}\nv_pk_add_f32 {vr(T+8,2)}, {vr(T+8,2)}, {vr(T+12,2)}')
    a(f'v_pk_add_f32 {vr(T,2)}, {vr(T,2)}, {vr(T+8,2)}\nv_add_f32 v{dst}, v{T}, v{T+1}')
def quad_gather(x, y1, y2, y3):
    a(f'''v_mov_b32_dpp v{y1}, v{x} quad_perm:[1,1,1,1] {DPPM}
v_mov_b32_dpp v{y2}, v{x} quad_perm:[2,2,2,2] {DPPM}
v_mov_b32_dpp v{y3}, v{x} quad_perm:[3,3,3,3] {DPPM}''')

hdr = open('cdna_kernels/' + NAME + '.s.ref').read().split('; Override')[0]
LDS = 32768
a.raw(hdr.rstrip('\n'))
a.raw(f'; @launch grid=(256,1,1) block=(576,1,1) lds={LDS}')
a.raw(f'''.amdgcn_target "amdgcn-amd-amdhsa--gfx950"
.text
.globl {NAME}_kernel
.p2align 8
.type {NAME}_kernel,@function
{NAME}_kernel:''')
stamp(0)
a(f'''s_load_dwordx16 s[4:19], s[0:1], 0
s_load_dwordx8 s[20:27], s[0:1], 64
s_load_dwordx4 s[28:31], s[0:1], 96
s_cmp_ge_u32 s2, 256
s_cbranch_scc1 L_exit
v_lshrrev_b32 v4, 6, v0
v_and_b32 v1, 63, v0
v_readfirstlane_b32 {WV}, v4
v_and_b32 v2, 15, v0
v_lshrrev_b32 v3, 4, v1
s_mov_b32 {PLO}, 0x05040100
s_mov_b32 {PHI}, 0x07060302
s_mov_b32 {MSK}, 0xffff0000
s_mov_b32 {PK0}, 0x07060501
s_mov_b32 {PK1}, 0x07060502
s_mov_b32 {PK2}, 0x07060503
s_mov_b32 {UP0}, 0x0c04000c
s_mov_b32 {UP1}, 0x04020100
s_mov_b32 {CNT}, 300000
s_waitcnt lgkmcnt(0)
s_load_dword {EP}, s[{S_WS}:{S_WS+1}], 0''')
srd(WS, S_WS, WSN)
stamp(1)
TOUCH = '--touch' in sys.argv
if TOUCH:
    a(f's_cmp_lg_u32 {WV}, 8\ns_cbranch_scc1 L_notouch\nv_lshlrev_b32 v5, 18, v1\ns_mov_b64 exec, 0xffff')
    for i, (b, n) in enumerate([(S_WO, 4096*1024), (S_WG, 512*3584), (S_WU, 512*3584), (S_WD, 1792*1024), (S_WM, 512*6144), (S_OUT, 1024), (S_X, 1024), (S_C, 1024), (S_WQ, 4096*1024)]):
        srd(RA, b, n)
        a(f'buffer_load_dword v{10+i}, v5, {RA}, 0 offen')
    a(f'v_lshlrev_b32 v5, 16, v1\nbuffer_load_dword v20, v5, {WS}, 0 offen offset:256\ns_mov_b64 exec, -1\ns_waitcnt vmcnt(0)\nL_notouch:')
a(f'''s_cmp_lt_u32 s2, 96
s_cbranch_scc1 L_notattn
s_cmp_lt_u32 s2, 224
s_cbranch_scc1 L_attn
L_notattn:
s_cmp_eq_u32 {WV}, 8
s_cbranch_scc1 L_exit
s_cmp_lt_u32 s2, 32
s_cbranch_scc1 L_roleA
s_cmp_lt_u32 s2, 96
s_cbranch_scc1 L_roleB
s_sub_u32 {ID}, s2, 224
s_branch L_ffn''')
def get_tag():
    a(f'''s_waitcnt lgkmcnt(0)
s_mul_i32 {TAG}, {EP}, 0x9E3779B1
s_add_u32 {TAG}, {TAG}, 0x7F4A7C15''')

PB = 0
def r4_geom(vrow, vnl, vP, vchunk_own, vchunk_all):
    a(f'''s_and_b32 {T2}, {WV}, 3
s_lshr_b32 {T3}, {WV}, 2
v_lshrrev_b32 v5, 2, v2
v_and_b32 v6, 3, v2
v_lshl_add_u32 v7, v5, 2, v3
s_lshl_b32 {T0}, {T2}, 4
v_add_u32 v{vchunk_own}, {T0}, v7
v_lshlrev_b32 v{vrow}, 3, v{vchunk_own}
v_lshlrev_b32 v{vnl}, 4, v6
v_add_u32 v8, {T2}, v6
v_and_b32 v8, 3, v8
v_lshl_add_u32 v{vchunk_all}, v8, 4, v7
s_mul_i32 {T0}, {T3}, {32*80}
s_lshl_b32 {T1}, {T2}, 4
s_add_u32 {T0}, {T0}, {T1}
v_mul_u32_u24 v{vP}, {8*80}, v6
v_lshl_add_u32 v{vP}, v5, 2, v{vP}
v_add_u32 v{vP}, {T0}, v{vP}''')

L_, F_, ACC_, AF_ = 32, 64, 96, 28
def mod_role(first):
    skip = newlab('modskip'); skip2 = newlab('modskip2')
    a(f's_cmp_ge_u32 {WV}, 4\ns_cbranch_scc1 {skip}')
    srd(RA, S_WM, 512*6144); srd(RB, S_C, 1024)
    r4_geom(10, 11, 12, 13, 14)
    a(f'''v_lshlrev_b32 v15, 4, v13
buffer_load_dwordx4 v[16:19], v15, {RB}, 0 offen
s_movk_i32 {T1}, 6144
v_mul_lo_u32 v15, v10, {T1}
s_lshl_b32 {T1}, {ID}, 6
v_add3_u32 v15, v15, v11, {T1}''')
    load_tile(L_, 15, RA, 6144)
    a('s_waitcnt vmcnt(8)')
    unpack(20, 16, 4)
    for i in range(8):
        a(f'v_mul_f32 v{F_+i}, {hex(LOG2E ^ 0x80000000)}, v{20+i}')
    for i in range(8): a(f'v_exp_f32 v{F_+i}, v{F_+i}')
    for i in range(8): a(f'v_add_f32 v{F_+i}, 1.0, v{F_+i}')
    for i in range(8): a(f'v_rcp_f32 v{F_+i}, v{F_+i}')
    for i in range(8): a(f'v_mul_f32 v{20+i}, v{20+i}, v{F_+i}')
    for i in range(4): a(f'v_cvt_pk_bf16_f32 v{AF_+i}, v{20+2*i}, v{21+2*i}')
    a('s_waitcnt vmcnt(0)')
    if first: stamp(2)
    perm_tile(F_, L_)
    gemv_core(AF_, F_, ACC_)
    gemv_write_r4(ACC_, 12)
    a(f'{skip}:')
    if first: get_tag()
    a('s_waitcnt lgkmcnt(0)\ns_barrier')
    a(f's_cmp_lg_u32 {WV}, 0\ns_cbranch_scc1 {skip2}')
    a(f'v_mul_u32_u24 v15, 80, v1')
    gemv_reduce(20, L_, 15)
    quad_gather(20, 21, 22, 23)
    a(f'''v_cvt_pk_bf16_f32 v24, v20, v21
v_cvt_pk_bf16_f32 v25, v22, v23
v_mov_b32 v26, {TAG}
v_mov_b32 v27, {TAG}
s_lshl_b32 {T0}, {ID}, 7
s_add_u32 {T0}, {T0}, {MODB}
v_lshlrev_b32 v15, 2, v1
s_mov_b32 exec_lo, 0x11111111
s_mov_b32 exec_hi, 0
buffer_store_dwordx4 v[24:27], v15, {WS}, {T0} offen sc1
s_mov_b64 exec, -1''')
    a(f'{skip2}:')

a('L_roleA:')
a(f's_mov_b32 {ID}, s2')
mod_role(True)
stamp(3)
a(f'''s_cmp_ge_u32 s2, 24
s_cbranch_scc1 L_end
s_add_u32 {ID}, s2, 32
s_barrier
s_branch L_ffn_notag''')

a('L_roleB:')
a(f's_sub_u32 {ID}, s2, 32')
srd(RA, S_WQ, 512*8192); srd(RB, S_X, 1024)
r4_geom(10, 11, 12, 13, 14)
a(f'''v_lshlrev_b32 v15, 4, v14
buffer_load_dwordx4 v[16:19], v15, {RB}, 0 offen
v_lshlrev_b32 v9, 13, v10
s_lshl_b32 {T1}, {ID}, 7
s_lshl_b32 {T0}, {T3}, 6
s_add_u32 {T1}, {T1}, {T0}
v_add3_u32 v9, v9, v11, {T1}''')
load_tile(L_, 9, RA, 8192)
a('s_waitcnt vmcnt(8)')
unpack(20, 16, 4)
layernorm8(20, F_, 5, 6, 7)
a('s_waitcnt vmcnt(0)')
stamp(2)
perm_tile(F_, L_)
get_tag()
a(f'v_lshlrev_b32 v15, 5, v14\ns_mov_b32 {T4}, {MODB}')
poll([(L_, 15, T4, 0), (L_+4, 15, T4, 16), (L_+8, 15, T4, 2048), (L_+12, 15, T4, 2064)])
stamp(3)
for i, src in enumerate([L_, L_+1, L_+4, L_+5]): unpack(L_+16+2*i, src, 1)
for i, src in enumerate([L_+8, L_+9, L_+12, L_+13]): unpack(ACC_+2*i, src, 1)
for i in range(8): a(f'v_add_f32 v{ACC_+i}, 1.0, v{ACC_+i}')
rnd_pairs(list(range(ACC_, ACC_+8)), 5)
for i in range(8): a(f'v_mul_f32 v{20+i}, v{20+i}, v{ACC_+i}')
rnd_pairs(list(range(20, 28)), 5)
for i in range(8): a(f'v_add_f32 v{20+i}, v{20+i}, v{L_+16+i}')
for i in range(4): a(f'v_cvt_pk_bf16_f32 v{AF_+i}, v{20+2*i}, v{21+2*i}')
gemv_core(AF_, F_, ACC_)
gemv_write_r4(ACC_, 12)
a('s_waitcnt lgkmcnt(0)\ns_barrier')
a(f's_cmp_lg_u32 {WV}, 0\ns_cbranch_scc1 L_B_skip')
a(f'v_mul_u32_u24 v15, 80, v1')
gemv_reduce(20, L_, 15)
quad_gather(20, 21, 22, 23)
a(f'''v_cvt_pk_bf16_f32 v24, v20, v21
v_cvt_pk_bf16_f32 v25, v22, v23
v_mov_b32 v26, {TAG}
v_mov_b32 v27, {TAG}
s_lshl_b32 {T0}, {ID}, 8
s_add_u32 {T0}, {T0}, {QB}
v_lshlrev_b32 v15, 2, v1
s_mov_b32 exec_lo, 0x11111111
s_mov_b32 exec_hi, 0x11111111
buffer_store_dwordx4 v[24:27], v15, {WS}, {T0} offen sc1
s_mov_b64 exec, -1
L_B_skip:''')
stamp(4)
a(f's_barrier\ns_add_u32 {ID}, {ID}, 32')
mod_role(False)
stamp(5)
a(f'''s_sub_u32 {ID}, {ID}, 32
s_cmp_lg_u32 {WV}, 0
s_cbranch_scc1 L_end
s_cmp_ge_u32 {ID}, 32
s_cbranch_scc1 L_end''')
srd(RA, S_X, 1024); srd(RB, S_OUT, 1024)
a(f'''v_and_b32 v5, 3, v1
v_lshrrev_b32 v6, 2, v1
s_lshl_b32 {T0}, {ID}, 2
v_add_u32 v5, {T0}, v5
v_lshlrev_b32 v7, 3, v5
buffer_load_dwordx2 v[10:11], v7, {RA}, 0 offen
v_lshlrev_b32 v8, 4, v5
v_lshl_add_u32 v9, v6, 11, v8
s_mov_b32 {T4}, {MODB + 256*16}
s_mov_b32 {T2}, {MODB + 640*16}
s_mov_b32 {T3}, {APB}''')
poll([(12, 8, T4, 0), (16, 8, T2, 0), (20, 9, T3, 0)], sleep=2)
stamp(6)
unpack24(20)
def red16(base):
    for c in ('row_ror:4', 'row_ror:8'):
        for i in range(4): a(f'v_add_f32_dpp v{base+i}, v{base+i}, v{base+i} {c} {DPPM}')
    for sw in ('v_permlane16_swap_b32', 'v_permlane32_swap_b32'):
        for i in range(4): a(f'v_mov_b32 v{40+i}, v{base+i}')
        for i in range(4): a(f'{sw} v{base+i}, v{40+i}')
        for i in range(4): a(f'v_add_f32 v{base+i}, v{base+i}, v{40+i}')
red16(20)
rnd_pairs([20, 21, 22, 23], 5)
unpack(24, 12, 2)
unpack(28, 16, 2)
unpack(32, 10, 2)
for i in range(4): a(f'v_mul_f32 v{20+i}, v{20+i}, v{24+i}')
rnd_pairs([20, 21, 22, 23], 5)
for i in range(4): a(f'v_add_f32 v{20+i}, v{20+i}, v{32+i}')
rnd_pairs([20, 21, 22, 23], 5)
a(f'''s_mov_b32 {T4}, {FPB}
s_mov_b32 {T2}, {FPB + 16*2048}
s_mov_b32 {T3}, {FPB + 32*2048}
s_mov_b32 {T1}, {FPB + 48*2048}
v_and_b32 v12, 7, v6
v_lshl_add_u32 v12, v12, 11, v8
v_mov_b32 v13, {T1}
v_add_u32 v12, v12, v13''')
poll([(48, 9, T4, 0), (52, 9, T2, 0), (56, 9, T3, 0), (60, 12, '0', 0)])
stamp(7)
for b in (48, 52, 56, 60): unpack24(b)
a('s_mov_b32 exec_lo, 0\ns_mov_b32 exec_hi, -1')
for i in range(4): a(f'v_mov_b32 v{60+i}, 0')
a('s_mov_b64 exec, -1')
for i in range(4): a(f'v_add_f32 v{48+i}, v{48+i}, v{52+i}\nv_add_f32 v{56+i}, v{56+i}, v{60+i}')
for i in range(4): a(f'v_add_f32 v{48+i}, v{48+i}, v{56+i}')
red16(48)
rnd_pairs([48, 49, 50, 51], 5)
for i in range(4): a(f'v_mul_f32 v{48+i}, v{48+i}, v{28+i}')
rnd_pairs([48, 49, 50, 51], 5)
for i in range(4): a(f'v_add_f32 v{48+i}, v{48+i}, v{20+i}')
DELAY = [int(x.split('=')[1]) for x in sys.argv if x.startswith('--delay=')]
if DELAY:
    a(f's_mov_b32 {T0}, {DELAY[0]}\nL_delay:\nv_add_f32 v60, v60, v60\ns_sub_u32 {T0}, {T0}, 1\ns_cbranch_scc0 L_delay')
if SCALE_OUT is not None:
    for i in range(4): a(f'v_mul_f32 v{48+i}, {hex(f2u(SCALE_OUT))}, v{48+i}')
a(f'''v_cvt_pk_bf16_f32 v52, v48, v49
v_cvt_pk_bf16_f32 v53, v50, v51
s_mov_b64 exec, 15
buffer_store_dwordx2 v[52:53], v7, {RB}, 0 offen
s_cmp_lg_u32 {ID}, 0
s_cbranch_scc1 L_red_done
s_mov_b64 exec, 1
s_add_u32 {T0}, {EP}, 1
v_mov_b32 v5, 0
v_mov_b32 v6, {T0}
buffer_store_dword v6, v5, {WS}, 0 offen sc1
L_red_done:
s_mov_b64 exec, -1''')
stamp(8)
ECHO = [x.split('=')[1].split(',') for x in sys.argv if x.startswith('--echo=')]
if ECHO:
    i, j = int(ECHO[0][0]), int(ECHO[0][1])
    a(f'''s_waitcnt lgkmcnt(0)
s_sub_u32 {T0}, s{PS0+2*j}, s{PS0+2*i}
s_min_u32 {T0}, {T0}, 10000
s_add_u32 {T0}, {T0}, s{PS0+16}
L_echo:
s_memrealtime s[{PS0+26}:{PS0+27}]
s_waitcnt lgkmcnt(0)
s_sub_u32 {T1}, {T0}, s{PS0+26}
s_cmp_gt_i32 {T1}, 0
s_cbranch_scc1 L_echo''')
a('s_branch L_end')

a('L_ffn:')
get_tag()
a('L_ffn_notag:')
r4_geom(10, 11, 12, 13, 14)
a(f'v_lshlrev_b32 v15, 8, v1\ns_mov_b32 {T4}, {QB}')
poll([(16, 15, T4, 0)], sleep=4)
stamp(4)
a(f'''s_cmp_lt_u32 {WV}, 4
s_cselect_b32 s36, s{S_WG}, s{S_WU}
s_cselect_b32 s37, s{S_WG+1}, s{S_WU+1}
s_mov_b32 s38, {512*3584}
s_mov_b32 s39, 0x20000
s_movk_i32 {T1}, 3584
v_mul_lo_u32 v15, v10, {T1}
s_lshl_b32 {T1}, {ID}, 6
v_add3_u32 v15, v15, v11, {T1}''')
load_tile(L_, 15, RA, 3584)
L2_, F2_ = 96, 128
srd(RB, S_WD, 1792*1024); srd(RC, S_X, 1024)
a(f'''s_cmp_ge_u32 {WV}, 4
s_cbranch_scc1 L_ffn_nodown
s_lshl_b32 {T1}, {ID}, 15
s_lshl_b32 {T0}, {WV}, 8
s_add_u32 {T1}, {T1}, {T0}
v_lshlrev_b32 v15, 13, v3
v_lshl_add_u32 v15, v2, 4, v15
v_add_u32 v15, {T1}, v15''')
load_tile(L2_, 15, RB, 1024)
a('L_ffn_nodown:')
a(f'''s_lshl_b32 {T0}, {WV}, 4
v_add_u32 v16, {T0}, v2
v_lshl_add_u32 v17, v16, 2, v3
v_lshlrev_b32 v18, 1, v17
buffer_load_ushort v19, v18, {RC}, 0 offen
v_lshlrev_b32 v20, 4, v16
s_mov_b32 {T4}, {MODB + 256*16}''')
poll([(128, 20, T4, 0), (132, 20, T4, 2048)], sleep=2)
a(f's_mov_b32 {T4}, {MODB + 512*16}')
poll([(136, 20, T4, 0)], sleep=2)
stamp(5)
a(f'''v_cmp_gt_u32 vcc, 2, v3
v_and_b32 v21, 1, v3
v_cmp_eq_u32 {TP}, 0, v21
v_cndmask_b32 v128, v129, v128, vcc
v_cndmask_b32 v132, v133, v132, vcc
v_cndmask_b32 v136, v137, v136, vcc''')
for b, d in ((128, 160), (132, 161), (136, 162)):
    a(f'v_lshlrev_b32 v{b+1}, 16, v{b}\nv_and_b32 v{b}, {MSK}, v{b}\nv_cndmask_b32 v{d}, v{b}, v{b+1}, {TP}')
a(f'v_lshlrev_b32 v19, 16, v19\nv_add_f32 v162, 1.0, v162')
rnd1(162, 162)
perm_tile(F_, L_)
a(f's_cmp_ge_u32 {WV}, 4\ns_cbranch_scc1 L_ffn_noperm2')
perm_tile(F2_, L2_)
a('L_ffn_noperm2:')
a(f'v_lshl_add_u32 v21, v3, 13, v20\ns_mov_b32 {T4}, {APB}\ns_mov_b32 {T2}, {APB+4096}')
ST = 8192
H2 = 8448
TT = 9472
a(f'''v_lshlrev_b32 v22, 4, v13
s_lshl_b32 {T0}, {WV}, 3
v_lshrrev_b32 v23, 1, v3
v_and_b32 v24, 1, v3
v_lshlrev_b32 v23, 6, v23
v_lshl_add_u32 v23, v24, 2, v23
v_add_u32 v23, {T0}, v23
v_lshrrev_b32 v24, 5, v1
v_lshlrev_b32 v24, 6, v24
v_lshl_add_u32 v24, v2, 2, v24''')
poll([(L_, 21, T4, 0), (L_+4, 21, T4, 2048), (L_+8, 21, T2, 0), (L_+12, 21, T2, 2048)])
stamp(6)
for i in range(4): unpack24(L_+4*i)
a(f'''v_pk_add_f32 {vr(L_,2)}, {vr(L_,2)}, {vr(L_+4,2)}
v_pk_add_f32 {vr(L_+2,2)}, {vr(L_+2,2)}, {vr(L_+6,2)}
v_pk_add_f32 {vr(L_+8,2)}, {vr(L_+8,2)}, {vr(L_+12,2)}
v_pk_add_f32 {vr(L_+10,2)}, {vr(L_+10,2)}, {vr(L_+14,2)}
v_pk_add_f32 {vr(L_,2)}, {vr(L_,2)}, {vr(L_+8,2)}
v_pk_add_f32 {vr(L_+2,2)}, {vr(L_+2,2)}, {vr(L_+10,2)}
v_permlane32_swap_b32 v{L_}, v{L_+2}
v_permlane32_swap_b32 v{L_+1}, v{L_+3}
v_add_f32 v{L_}, v{L_}, v{L_+2}
v_add_f32 v{L_+1}, v{L_+1}, v{L_+3}
v_permlane16_swap_b32 v{L_}, v{L_+1}
v_add_f32 v25, v{L_}, v{L_+1}''')
rnd1(25, 25)
a('v_mul_f32 v25, v25, v160'); rnd1(25, 25)
a('v_add_f32 v25, v25, v19'); rnd1(25, 25)
a(f'''v_mov_b32 v26, v25
v_mul_f32 v27, v25, v25
v_permlane32_swap_b32 v26, v27
v_add_f32 v26, v26, v27''')
for c in ('quad_perm:[1,0,3,2]', 'quad_perm:[2,3,0,1]', 'row_half_mirror', 'row_mirror'):
    a(f'v_add_f32_dpp v26, v26, v26 {c} {DPPM}')
a(f'''s_mov_b32 exec_lo, 0x00010001
s_mov_b32 exec_hi, 0x00010001
ds_write_b32 v23, v26 offset:{ST}
s_mov_b64 exec, -1
s_waitcnt lgkmcnt(0)
s_barrier
ds_read_b32 v26, v24 offset:{ST}
s_waitcnt lgkmcnt(0)''')
for c in ('quad_perm:[1,0,3,2]', 'quad_perm:[2,3,0,1]', 'row_half_mirror', 'row_mirror'):
    a(f'v_add_f32_dpp v26, v26, v26 {c} {DPPM}')
a(f'''v_mul_f32 v26, {hex(f2u(1/512))}, v26
v_mov_b32 v27, v26
v_permlane32_swap_b32 v26, v27
v_fma_f32 v27, -v26, v26, v27
v_max_f32 v27, 0, v27''')
ln_scalars(26, 27, 5)
a('v_sub_f32 v25, v25, v26'); rnd1(25, 25)
div_nr(25, 27, 5, 6); rnd1(25, 25)
a('v_mul_f32 v25, v25, v162'); rnd1(25, 25)
a(f'''v_add_f32 v25, v25, v161
v_cvt_pk_bf16_f32 v25, v25, v25
ds_write_b16 v18, v25 offset:{H2}
s_waitcnt lgkmcnt(0)
s_barrier
ds_read_b128 {vr(AF_,4)}, v22 offset:{H2}
s_waitcnt lgkmcnt(0)''')
stamp(7)
gemv_core(AF_, F_, ACC_)
gemv_write_r4(ACC_, 12)
a('s_waitcnt lgkmcnt(0)\ns_barrier')
a(f's_cmp_ge_u32 {WV}, 4\ns_cbranch_scc1 L_end')
a(f'v_mul_u32_u24 v15, 80, v1')
gemv_reduce(20, L_, 15)
rnd1(20, 20)
K1 = -2 * 0.7978845608028654 * 1.4426950408889634
a(f'''v_mov_b32 v21, v20
v_permlane32_swap_b32 v20, v21
v_mul_f32 v22, v20, v20
v_mov_b32 v23, {hex(f2u(K1))}
v_mov_b32 v24, {hex(f2u(K1*0.044715))}
v_fma_f32 v22, v22, v24, v23
v_mul_f32 v22, v22, v20
v_exp_f32 v22, v22
v_add_f32 v22, 1.0, v22
v_rcp_f32 v22, v22
v_mul_f32 v20, v20, v22''')
rnd1(20, 20)
a(f'''v_mul_f32 v20, v20, v21
v_cvt_pk_bf16_f32 v20, v20, v20
s_lshl_b32 {T0}, {WV}, 7
v_lshl_add_u32 v21, v1, 1, {T0}
v_lshl_add_u32 v22, v3, 4, {T0}
ds_write_b16 v21, v20 offset:{TT}
s_waitcnt lgkmcnt(0)
ds_read_b128 {vr(AF_,4)}, v22 offset:{TT}
s_waitcnt lgkmcnt(0)''')
gemv_core(AF_, F2_, ACC_)
a(f'''v_cmp_gt_u32 vcc, 16, v1
s_lshl_b32 {T0}, {ID}, 11
s_lshl_b32 {T1}, {WV}, 9
s_add_u32 {T0}, {T0}, {T1}
s_add_u32 {T0}, {T0}, {FPB}
v_lshlrev_b32 v15, 5, v2
v_lshl_add_u32 v15, v3, 4, v15''')
for i in range(4): a(f'v_cndmask_b32 v{20+i}, v{ACC_+16+4*i}, v{ACC_+4*i}, vcc')
pack24(24, 20, 21, 22, 23)
a(f'''s_mov_b32 exec_hi, 0
buffer_store_dwordx4 v[24:27], v15, {WS}, {T0} offen sc1
s_mov_b64 exec, -1''')
stamp(8)
a('s_branch L_end')

QL = 0; OL = 1024; OW = 2112; MLL = OL + 8*OW; DP = MLL + 256
a('L_attn:')
a(f'''s_sub_u32 {ID}, s2, 96
s_and_b32 {T2}, {ID}, 7
s_lshr_b32 {T3}, {ID}, 3
s_cmp_eq_u32 {WV}, 8
s_cbranch_scc1 L_comm''')
srd(RA, S_K, 0x8000000); srd(RB, S_V, 0x8000000)
KF, VL, VF, SC, PF, OA = 32, 64, 32, 16, 24, 96
a(f'''s_lshl_b32 {T0}, {T2}, 24
s_lshl_b32 {T1}, {T3}, 16
s_add_u32 {T0}, {T0}, {T1}
s_lshl_b32 {T1}, {WV}, 13
s_add_u32 {T0}, {T0}, {T1}
s_add_u32 {T4}, {T0}, {61440*256}
s_add_u32 {T1}, {T4}, 4096
v_and_b32 v5, 3, v2
v_lshrrev_b32 v6, 2, v2
v_lshl_add_u32 v5, v5, 2, v6
v_lshlrev_b32 v5, 8, v5
v_lshl_add_u32 v5, v3, 4, v5
v_lshlrev_b32 v6, 4, v1''')
for T in range(2):
    for kk in range(4):
        a(f'buffer_load_dwordx4 {vr(KF+16*T+4*kk,4)}, v5, {RA}, {T4 if T==0 else T1} offen offset:{64*kk} nt')
for j in range(8):
    a(f'buffer_load_dwordx4 {vr(VL+4*j,4)}, v6, {RB}, {T4 if j<4 else T1} offen offset:{1024*(j&3)} nt')
stamp(2)
a(f'''v_and_b32 v7, 3, v2
v_lshlrev_b32 v7, 8, v7
v_lshl_add_u32 v7, v3, 4, v7
s_mul_i32 {T0}, {WV}, {OW}
v_mul_u32_u24 v8, 528, v2
v_lshl_add_u32 v8, v3, 7, v8
v_add_u32 v8, {T0}, v8
s_lshl_b32 {T0}, {WV}, 3
v_lshl_add_u32 v9, v2, 6, {T0}''')
srd(RC, S_WO, 4096*1024)
JJ = 's66'; CB = 's67'; HG = 's68'
a(f'''s_and_b32 {T0}, {T3}, 1
s_lshl_b32 {JJ}, {T2}, 1
s_add_u32 {JJ}, {JJ}, {T0}
s_lshr_b32 {CB}, {ID}, 4
s_lshr_b32 {T0}, {WV}, 2
s_lshl_b32 {HG}, {JJ}, 1
s_add_u32 {HG}, {HG}, {T0}
v_lshrrev_b32 v10, 3, v2
v_lshl_add_u32 v10, v10, 2, v3
v_lshlrev_b32 v10, 10, v10
v_and_b32 v11, 7, v2
v_lshl_add_u32 v10, v11, 4, v10
s_lshl_b32 {T0}, {JJ}, 18
s_lshl_b32 {T1}, {WV}, 15
s_add_u32 {T0}, {T0}, {T1}
s_lshl_b32 {T1}, {CB}, 7
s_add_u32 {T0}, {T0}, {T1}
v_add_u32 v10, {T0}, v10''')
get_tag()
a('s_barrier')
stamp(3)
WL, WF = 132, 148
load_tile(WL, 10, RC, 8192, nl=4)
for kk in range(4): a(f'ds_read_b128 {vr(OA+4*kk,4)}, v7 offset:{QL+64*kk}')
a('s_waitcnt vmcnt(12) lgkmcnt(0)')
stamp(4)
for T in range(2):
    for kk in range(4):
        a(f'v_mfma_f32_16x16x32_bf16 {vr(SC+4*T,4)}, {vr(KF+16*T+4*kk,4)}, {vr(OA+4*kk,4)}, {"0" if kk==0 else vr(SC+4*T,4)}')
S8 = list(range(SC, SC+8))
rnd_pairs(S8, 5)
for r in S8: a(f'v_mul_f32 v{r}, {hex(f2u(128**-0.5))}, v{r}')
rnd_pairs(S8, 5)
a(f'''v_max3_f32 v12, v{SC}, v{SC+1}, v{SC+2}
v_max3_f32 v13, v{SC+3}, v{SC+4}, v{SC+5}
v_max3_f32 v12, v12, v{SC+6}, v{SC+7}
v_max_f32 v12, v12, v13
v_mov_b32 v13, v12
v_permlane16_swap_b32 v12, v13
v_max_f32 v12, v12, v13
v_mov_b32 v13, v12
v_permlane32_swap_b32 v12, v13
v_max_f32 v12, v12, v13''')
for r in S8: a(f'v_sub_f32 v{r}, v{r}, v12')
for r in S8: a(f'v_mul_f32 v{r}, {hex(LOG2E)}, v{r}')
for r in S8: a(f'v_exp_f32 v{r}, v{r}')
for i in range(4): a(f'v_cvt_pk_bf16_f32 v{PF+i}, v{SC+2*i}, v{SC+2*i+1}')
for i in range(4): a(f'v_mov_b32 v{28+i}, 0x3f803f80')
a('s_waitcnt vmcnt(4)')
stamp(5)
perm_tile(VF, VL)
for dd in range(8):
    a(f'v_mfma_f32_16x16x32_bf16 {vr(OA+4*dd,4)}, {vr(VF+4*dd,4)}, {vr(PF,4)}, 0')
a(f'v_mfma_f32_16x16x32_bf16 {vr(OA+32,4)}, v[28:31], {vr(PF,4)}, 0')
a('s_mov_b32 exec_lo, 0x000F000F\ns_mov_b32 exec_hi, 0x000F000F')
for dd in range(8):
    a(f'ds_write_b128 v8, {vr(OA+4*dd,4)} offset:{OL+16*dd}')
a(f'''s_mov_b64 exec, 15
ds_write2_b32 v9, v12, v{OA+32} offset0:{0} offset1:{1}''' .replace('v9,', 'v14,') if False else 's_mov_b64 exec, 15')
a(f'''v_add_u32 v14, {MLL}, v9
ds_write2_b32 v14, v12, v{OA+32} offset0:0 offset1:1
s_mov_b64 exec, -1
s_waitcnt lgkmcnt(0)
s_barrier''')
stamp(6)
a(f'''s_cmp_ge_u32 {WV}, 3
s_cbranch_scc1 L_attn_D
s_cmp_eq_u32 {WV}, 2
s_cbranch_scc1 L_attn_ml
v_lshrrev_b32 v12, 5, v1
s_lshl_b32 {T0}, {WV}, 1
v_add_u32 v12, {T0}, v12
v_and_b32 v13, 7, v1
v_lshlrev_b32 v14, 6, v12
v_lshl_add_u32 v14, v13, 3, v14
ds_read_b32 v15, v14 offset:{MLL}
v_mul_u32_u24 v16, 528, v12
v_and_b32 v17, 31, v1
v_lshl_add_u32 v16, v17, 4, v16''')
for w in range(8): a(f'ds_read_b128 {vr(KF+4*w,4)}, v16 offset:{OL+OW*w}')
a(f'''s_lshl_b32 {T0}, {T2}, 15
s_lshl_b32 {T1}, {T3}, 9
s_add_u32 {T0}, {T0}, {T1}
s_add_u32 {T0}, {T0}, {OPB}
v_lshlrev_b32 v18, 13, v12
v_lshl_add_u32 v18, v17, 4, v18
s_waitcnt lgkmcnt(8)
v_max_f32_dpp v19, v15, v15 row_ror:1 {DPPM}
v_max_f32_dpp v19, v19, v19 row_ror:2 {DPPM}
v_max_f32_dpp v19, v19, v19 row_ror:4 {DPPM}
v_sub_f32 v15, v15, v19
v_mul_f32 v15, {hex(LOG2E)}, v15
v_exp_f32 v15, v15
s_waitcnt lgkmcnt(0)''')
for i in range(4): a(f'v_mul_f32_dpp v{20+i}, v15, v{KF+i} row_newbcast:0 {DPPM}')
for w in range(1, 8):
    for i in range(4): a(f'v_fmac_f32_dpp v{20+i}, v15, v{KF+4*w+i} row_newbcast:{w} {DPPM}')
pack24(24, 20, 21, 22, 23)
a(f'''buffer_store_dwordx4 v[24:27], v18, {WS}, {T0} offen sc1
s_branch L_attn_D
L_attn_ml:
v_and_b32 v13, 7, v1
v_lshlrev_b32 v14, 6, v3
v_lshl_add_u32 v14, v13, 3, v14
ds_read_b64 v[16:17], v14 offset:{MLL}
s_lshl_b32 {T0}, {T2}, 10
s_lshl_b32 {T1}, {T3}, 4
s_add_u32 {T0}, {T0}, {T1}
s_add_u32 {T0}, {T0}, {MLB}
v_lshlrev_b32 v18, 8, v3
s_waitcnt lgkmcnt(0)
v_max_f32_dpp v24, v16, v16 row_ror:1 {DPPM}
v_max_f32_dpp v24, v24, v24 row_ror:2 {DPPM}
v_max_f32_dpp v24, v24, v24 row_ror:4 {DPPM}
v_sub_f32 v16, v16, v24
v_mul_f32 v16, {hex(LOG2E)}, v16
v_exp_f32 v16, v16
v_mul_f32 v25, v16, v17
v_add_f32_dpp v25, v25, v25 row_ror:1 {DPPM}
v_add_f32_dpp v25, v25, v25 row_ror:2 {DPPM}
v_add_f32_dpp v25, v25, v25 row_ror:4 {DPPM}
v_mov_b32 v26, {TAG}
v_mov_b32 v27, {TAG}
s_mov_b32 exec_lo, 0x00010001
s_mov_b32 exec_hi, 0x00010001
buffer_store_dwordx4 v[24:27], v18, {WS}, {T0} offen sc1
s_mov_b64 exec, -1
L_attn_D:''')
stamp(7)
a(f'''v_and_b32 v12, 3, v2
v_lshrrev_b32 v13, 3, v2
v_lshl_add_u32 v12, v13, 2, v12
v_bfe_u32 v13, v2, 2, 1
v_lshl_add_u32 v13, v13, 2, v3
v_lshlrev_b32 v14, 10, v12
v_lshl_add_u32 v14, v13, 4, v14
v_lshlrev_b32 v15, 5, v12
s_lshl_b32 {T0}, {HG}, 13
s_and_b32 {T1}, {WV}, 3
s_lshl_b32 {T1}, {T1}, 7
s_add_u32 {T4}, {T0}, {T1}
s_add_u32 {T4}, {T4}, {OPB}
s_lshl_b32 {T2}, {HG}, 8
s_add_u32 {T2}, {T2}, {MLB}
v_and_b32 v16, 7, v2
v_mul_u32_u24 v16, 640, v16
v_lshrrev_b32 v17, 3, v2
v_lshl_add_u32 v16, v17, 2, v16
s_lshl_b32 {T0}, {WV}, 3
s_add_u32 {T0}, {T0}, {DP}
v_add_u32 v16, {T0}, v16
s_waitcnt vmcnt(0)''')
perm_tile(WF, WL, nl=4)
poll([(32, 14, T4, 0), (36, 14, T4, 512), (40, 15, T2, 0), (44, 15, T2, 16)])
stamp(8)
unpack24(32); unpack24(36)
RED3 = ('quad_perm:[1,0,3,2]', 'quad_perm:[2,3,0,1]', 'row_ror:8')
a('v_max_f32 v18, v40, v44')
for c in RED3: a(f'v_max_f32_dpp v18, v18, v18 {c} {DPPM}')
a(f'''v_sub_f32 v40, v40, v18
v_sub_f32 v44, v44, v18
v_mul_f32 v40, {hex(LOG2E)}, v40
v_mul_f32 v44, {hex(LOG2E)}, v44
v_exp_f32 v40, v40
v_exp_f32 v44, v44
v_mul_f32 v48, v40, v41
v_fmac_f32 v48, v44, v45''')
for i in range(4): a(f'v_mul_f32 v{32+i}, v40, v{32+i}')
for i in range(4): a(f'v_fmac_f32 v{32+i}, v44, v{36+i}')
for c in RED3:
    for r in (48, 32, 33, 34, 35): a(f'v_add_f32_dpp v{r}, v{r}, v{r} {c} {DPPM}')
a('v_rcp_f32 v48, v48')
for i in range(4): a(f'v_mul_f32 v{32+i}, v48, v{32+i}')
a('v_cvt_pk_bf16_f32 v36, v32, v33\nv_cvt_pk_bf16_f32 v37, v34, v35')
for dd in range(8):
    a(f'v_mfma_f32_16x16x16_bf16 {vr(OA+4*dd,4)}, v[36:37], {vr(WF+2*dd,2)}, 0')
a('s_mov_b32 exec_lo, 0xFF0000FF\ns_mov_b32 exec_hi, 0')
for dd in range(0, 8, 2):
    a(f'ds_write2_b32 v16, v{OA+4*dd}, v{OA+4*dd+4} offset0:{20*dd} offset1:{20*dd+20}')
a(f'''s_mov_b64 exec, -1
s_waitcnt lgkmcnt(0)
s_barrier
s_cmp_lg_u32 {WV}, 0
s_cbranch_scc1 L_end
v_mul_u32_u24 v15, 80, v1
v_add_u32 v15, {DP}, v15''')
gemv_reduce(20, 32, 15)
quad_gather(20, 21, 22, 23)
pack24(24, 20, 21, 22, 23)
a(f'''s_lshl_b32 {T0}, {JJ}, 11
s_lshl_b32 {T1}, {CB}, 8
s_add_u32 {T0}, {T0}, {T1}
s_add_u32 {T0}, {T0}, {APB}
v_lshlrev_b32 v15, 2, v1
s_mov_b32 exec_lo, 0x11111111
s_mov_b32 exec_hi, 0x11111111
buffer_store_dwordx4 v[24:27], v15, {WS}, {T0} offen sc1
s_mov_b64 exec, -1''')
stamp(9)
a('s_branch L_end')
a('L_comm:')
get_tag()
a(f'''s_lshl_b32 {T4}, {T2}, 11
s_add_u32 {T4}, {T4}, {QB}
v_lshlrev_b32 v5, 4, v1
v_lshlrev_b32 v6, 3, v1''')
poll([(8, 5, T4, 0), (12, 5, T4, 1024)], sleep=1)
stamp(3)
a(f'''ds_write_b64 v6, v[8:9] offset:{QL}
ds_write_b64 v6, v[12:13] offset:{QL+512}
s_waitcnt lgkmcnt(0)
s_barrier''')
a('L_end:')
end()
a('L_exit:\ns_endpgm')
a.raw(f'''.section .rodata,"a"
.p2align 6
.amdhsa_kernel {NAME}_kernel
  .amdhsa_next_free_vgpr 168
  .amdhsa_next_free_sgpr 102
  .amdhsa_accum_offset 168
  .amdhsa_group_segment_fixed_size 0
  .amdhsa_kernarg_size 112
  .amdhsa_user_sgpr_count 2
  .amdhsa_user_sgpr_kernarg_segment_ptr 1
  .amdhsa_system_sgpr_workgroup_id_x 1
  .amdhsa_float_denorm_mode_32 3
.end_amdhsa_kernel''')
open(OUT, 'w').write(a.text())
print('wrote', OUT, 'pads', a.npad)
```
